```python
import torch

def _softmax(x, axis=-1):
    return torch.softmax(x, dim=axis)
def _gelu(x):
    return torch.nn.functional.gelu(x, approximate="tanh")
def _silu(x):
    return torch.nn.functional.silu(x)
def _sigmoid(x):
    return torch.sigmoid(x)
def _layernorm(x, axis=-1, eps=1e-5):
    m = x.mean(dim=axis, keepdim=True)
    v = x.var(dim=axis, keepdim=True, unbiased=False)
    return (x - m) / torch.sqrt(v + eps)
def _scatter_add(tgt, idx, src, axis=0):
    return tgt.clone().index_add_(axis, idx, src)
def _segment_sum(src, seg, n):
    out = torch.zeros((n,) + src.shape[1:], dtype=src.dtype)
    return out.index_add_(0, seg, src)
def _pad(x, pw):
    flat = tuple(v for pair in reversed(pw) for v in pair)
    return torch.nn.functional.pad(x, flat)

kernel_name = 'parallel_sum__linear_attn_block__glu_gated_bilinear__prompt'

def setup_inputs():

    _w = (lambda a: (lambda t: t.to(torch.bfloat16) if t.is_floating_point() else t)(torch.as_tensor(a)))
    def _A_setup():
        B, S, D = 1, 2048, 640
        return {
            "x": _w((lambda *s: torch.randn(*s, dtype=torch.bfloat16) * 0.05)(B, S, D)),
            "wqkv": _w((lambda *s: torch.randn(*s, dtype=torch.bfloat16) * 0.05)(D, 3 * D)),
            "wo": _w((lambda *s: torch.randn(*s, dtype=torch.bfloat16) * 0.05)(D, D)),
        }
    _A_in = _A_setup()

    def _B_setup():
        B, S, D, F = 1, 2048, 640, 1728
        return {
            "x": _w((lambda *s: torch.randn(*s, dtype=torch.bfloat16) * 0.05)(B, S, D)),
            "w_gate": _w((lambda *s: torch.randn(*s, dtype=torch.bfloat16) * 0.2)(D, F) * (D ** -0.5)),
            "w_up": _w((lambda *s: torch.randn(*s, dtype=torch.bfloat16) * 0.2)(D, F) * (D ** -0.5)),
            "w_down": _w((lambda *s: torch.randn(*s, dtype=torch.bfloat16) * 0.2)(F, D) * (F ** -0.5)),
        }
    _B_in = _B_setup()

    return {
        "A_x": _A_in["x"],
        "A_wqkv": _A_in["wqkv"],
        "A_wo": _A_in["wo"],
        "B_x": _B_in["x"],
        "B_w_gate": _B_in["w_gate"],
        "B_w_up": _B_in["w_up"],
        "B_w_down": _B_in["w_down"],
    }

def reference(A_x, A_wqkv, A_wo, B_x, B_w_gate, B_w_up, B_w_down):
    def _A_ref(x, wqkv, wo):
        B, S, D = x.shape
        H = 32; Dh = D // H
        qkv = (lambda x, *d: x.permute(*d))((x @ wqkv).reshape(B, S, 3, H, Dh), 2, 0, 3, 1, 4)
        q, k, v = qkv[0], qkv[1], qkv[2]
        phi = lambda t: torch.where(t > 0, t + 1, torch.exp(t)) + 1e-6
        pq, pk = phi(q), phi(k)
        kv = torch.einsum("bhsd,bhse->bhde", pk, v)
        z = torch.einsum("bhsd->bhd", pk)
        num = torch.einsum("bhqd,bhde->bhqe", pq, kv)
        den = torch.einsum("bhqd,bhd->bhq", pq, z)[..., None] + 1e-6
        o = num / den
        return (lambda x, *d: x.permute(*d))(o, 0, 2, 1, 3).reshape(B, S, D) @ wo

    def _B_ref(x, w_gate, w_up, w_down):
        g = torch.einsum("bsd,df->bsf", x, w_gate)
        u = torch.einsum("bsd,df->bsf", x, w_up)
        h = g * u
        return torch.einsum("bsf,fd->bsd", h, w_down)

    x = A_x
    xn = _layernorm(x, axis=-1)
    return x + _A_ref(xn, A_wqkv, A_wo) + _B_ref(xn, B_w_gate, B_w_up, B_w_down)
```

```python
import re, copy

REG = re.compile(r'^(-|abs\()?([vas])(\d+)\)?$')
RNG = re.compile(r'^(-)?([vas])\[(\d+):(\d+)\]$')

def regs_of(op):
    op = op.strip()
    m = REG.match(op)
    if m: return [m.group(2) + m.group(3)]
    m = RNG.match(op)
    if m: return [m.group(2) + str(i) for i in range(int(m.group(3)), int(m.group(4)) + 1)]
    if op in ('vcc', 'exec', 'm0', 'scc'): return [op]
    if op in ('vcc_lo', 'vcc_hi'): return ['vcc']
    if op in ('exec_lo', 'exec_hi'): return ['exec']
    return []

def split_ops(s):
    out, depth, cur = [], 0, ''
    for ch in s:
        if ch in '[(': depth += 1
        if ch in '])': depth -= 1
        if ch == ',' and depth == 0:
            out.append(cur.strip()); cur = ''
        else: cur += ch
    if cur.strip(): out.append(cur.strip())
    return out

TRANS = ('v_exp_f32', 'v_log_f32', 'v_rcp_f32', 'v_rsq_f32', 'v_sqrt_f32', 'v_sin_f32', 'v_cos_f32')
SALU_NODST = ('s_cmp', 's_waitcnt', 's_barrier', 's_nop', 's_cbranch', 's_branch', 's_setprio', 's_endpgm', 's_sleep', 's_bitcmp')

class Ins:
    __slots__ = ('text', 'op', 'kind', 'wr', 'rd', 'srcc', 'dpp', 'tag', 'wide')
    def __init__(self, text, tag=None):
        self.text = text; self.tag = tag; self.srcc = []; self.dpp = False; self.wide = False
        t = text.strip()
        sp = t.split(None, 1)
        op = sp[0]; rest = sp[1] if len(sp) > 1 else ''
        self.op = op
        ops = split_ops(rest)
        mods = ''
        if ops:
            last = ops[-1].split(None, 1)
            if len(last) > 1 and not last[0].endswith('('):
                ops[-1] = last[0]; mods = last[1]
        R = lambda i: regs_of(ops[i]) if i < len(ops) else []
        allr = lambda a, b=None: [r for o in ops[a:b] for r in regs_of(o)]
        wr, rd = [], []
        if op.startswith('v_mfma'):
            self.kind = 'mfma'; wr = R(0); rd = R(1) + R(2) + R(3); self.srcc = R(3)
        elif op.startswith('ds_read') or op.startswith('ds_bpermute') or op.startswith('ds_swizzle'):
            self.kind = 'dsr'; wr = R(0); rd = allr(1)
        elif op.startswith('ds_write') or op.startswith('ds_add'):
            self.kind = 'dsw'; rd = allr(0)
        elif op.startswith('buffer_') or op.startswith('global_'):
            lds = ' lds' in (' ' + mods) or '_lds_' in op
            if lds:
                self.kind = 'dma'; rd = allr(0) + ['m0']
            elif '_load' in op:
                self.kind = 'vld'; wr = R(0); rd = allr(1)
            elif '_store' in op:
                self.kind = 'vst'; rd = allr(0); self.wide = ('x4' in op or 'x3' in op)
            elif '_atomic' in op:
                self.kind = 'vst'; rd = allr(0)
                if 'sc0' in mods:
                    self.kind = 'vld'; wr = R(0) if op.startswith('buffer_') else R(0)
            else: raise ValueError(text)
        elif op.startswith('s_load') or op.startswith('s_mem'):
            self.kind = 'smem'; wr = R(0); rd = allr(1)
        elif op.startswith('s_'):
            self.kind = 'salu'
            if any(op.startswith(p) for p in SALU_NODST):
                rd = allr(0)
                if op.startswith('s_cmp') or op.startswith('s_bitcmp'): wr = ['scc']
                if op.startswith('s_cbranch_scc'): rd = ['scc']
                if op.startswith('s_cbranch_vcc'): rd = ['vcc']
                if op.startswith('s_cbranch_exec'): rd = ['exec']
            else:
                wr = R(0); rd = allr(1)
                if 'saveexec' in op: wr = wr + ['exec']; rd = rd + ['exec']
                if op.startswith('s_cselect') or op.startswith('s_addc') or op.startswith('s_subb'): rd = rd + ['scc']
                if op.startswith('s_addk') or op.startswith('s_mulk'): rd = rd + wr
                if not (op.startswith('s_mov') or op.startswith('s_cselect') or op.startswith('s_mul') or op.startswith('s_getpc') or op.startswith('s_getreg')): wr = wr + ['scc']
        elif op.startswith('v_'):
            self.kind = 'trans' if any(op.startswith(x) for x in TRANS) else 'valu'
            self.dpp = any(x in mods for x in ('row_', 'quad_perm', 'wave_'))
            if op.startswith('v_cmp'):
                wr = R(0); rd = allr(1)
                if op.startswith('v_cmpx'): wr = wr + ['exec']
            elif op.startswith('v_permlane') and 'swap' in op:
                wr = R(0) + R(1); rd = R(0) + R(1)
            elif op.startswith('v_add_co') or op.startswith('v_sub_co') or op.startswith('v_addc_co') or op.startswith('v_subb_co'):
                wr = R(0) + R(1); rd = allr(2)
            else:
                wr = R(0); rd = allr(1)
                if op.startswith('v_fmac') or op.startswith('v_dot2c') or op.startswith('v_pk_fmac') or op.startswith('v_writelane') or self.dpp:
                    rd = rd + wr
        else:
            raise ValueError('unknown op: ' + text)
        self.wr = wr; self.rd = rd

class Emit:
    def __init__(self):
        self.lines = []
        self.t = 0
        self.lastw = {}
        self.lastc = {}
        self.lastst = {}
        self.vm = []
        self.lg = []
        self.smem_pending = set()
        self.nops = 0; self.waits = 0; self.count = {}
        self.check_only = False
    def clone(self):
        e = copy.copy(self)
        e.lines = []
        e.lastw = dict(self.lastw); e.lastc = dict(self.lastc); e.lastst = dict(self.lastst)
        e.vm = list(self.vm); e.lg = list(self.lg); e.smem_pending = set(self.smem_pending)
        e.count = dict(self.count)
        return e
    def raw(self, s):
        self.lines.append(s)
    def comment(self, s): self.lines.append('; ' + s)
    def label(self, name):
        self.lines.append(name + ':')
    def _put(self, text, n=1):
        self.lines.append('  ' + text); self.t += n
    def nop(self, n):
        while n > 0:
            k = min(n, 16)
            self._put(f's_nop {k-1}', k); n -= k; self.nops += 1
    def waitcnt(self, vm=None, lg=None):
        parts = []
        if vm is not None:
            vm = min(vm, 63)
            if vm < len(self.vm):
                parts.append(f'vmcnt({vm})'); self.vm = self.vm[len(self.vm)-vm:] if vm > 0 else []
        if lg is not None:
            lg = min(lg, 15)
            if lg < len(self.lg) or (lg == 0 and self.smem_pending):
                parts.append(f'lgkmcnt({lg})'); self.lg = self.lg[len(self.lg)-lg:] if lg > 0 else []
                if lg == 0: self.smem_pending = set()
        if parts:
            self._put('s_waitcnt ' + ' '.join(parts)); self.waits += 1
    def wait_vm_tag(self, pred):
        idx = -1
        for i, (d, tg) in enumerate(self.vm):
            if tg is not None and pred(tg): idx = i
        if idx >= 0: self.waitcnt(vm=len(self.vm) - 1 - idx)
    def wait_lg_tag(self, pred):
        idx = -1
        for i, (d, tg) in enumerate(self.lg):
            if tg is not None and pred(tg): idx = i
        if idx >= 0: self.waitcnt(lg=len(self.lg) - 1 - idx)
    def wait_all(self): self.waitcnt(vm=0, lg=0)
    def barrier(self): self._put('s_barrier')
    def __call__(self, text, tag=None):
        for ln in text.strip().split('\n'):
            ln = ln.strip()
            if not ln or ln.startswith(';'): continue
            if ln.endswith(':'): self.label(ln[:-1]); continue
            self.ins(Ins(ln, tag))
    def ins(self, I):
        touched = set(I.rd) | set(I.wr)
        need_vm = need_lg = None
        for i, (d, tg) in enumerate(self.vm):
            if d & touched: need_vm = len(self.vm) - 1 - i
        for i, (d, tg) in enumerate(self.lg):
            if d & touched: need_lg = len(self.lg) - 1 - i
        if self.smem_pending & touched: need_lg = 0
        if need_lg is not None and self.smem_pending: need_lg = 0
        if need_vm is not None or need_lg is not None: self.waitcnt(vm=need_vm, lg=need_lg)
        need = 0
        k = I.kind
        isv = k in ('valu', 'trans')
        mem = k in ('vld', 'vst', 'dma', 'dsr', 'dsw')
        def gap(tw, n):
            nonlocal need
            need = max(need, n - (self.t - tw - 1))
        for r in I.rd:
            if r not in self.lastw: continue
            tw, kw, W = self.lastw[r]
            wv = kw in ('valu', 'trans')
            if kw == 'mfma':
                passes = 8 if '32x32' in W.op else 4
                if k == 'mfma':
                    if r in I.srcc and I.srcc == W.wr: pass
                    elif r in I.srcc: gap(tw, passes + 2)
                    else: gap(tw, passes + 4)
                else: gap(tw, passes + 4)
            elif wv:
                if k == 'mfma' and r[0] in 'va': gap(tw, 2)
                if k == 'mfma' and r == 'exec': gap(tw, 4)
                if I.dpp and r[0] == 'v': gap(tw, 2)
                if I.op.startswith('v_permlane') and r[0] == 'v': gap(tw, 2)
                if (I.op.startswith('v_readlane') or I.op.startswith('v_readfirstlane')) and r[0] == 'v': gap(tw, 1)
                if kw == 'trans' and k == 'valu': gap(tw, 1)
                if kw == 'trans' and k != 'valu' and k != 'trans': gap(tw, 1)
                if r[0] == 's' or r == 'vcc':
                    if isv: gap(tw, 4 if I.op.startswith('v_readlane') or I.op.startswith('v_writelane') else 2)
                    if mem: gap(tw, 5)
                    if k == 'salu' or k == 'smem': gap(tw, 1)
            elif kw == 'salu':
                if r == 'm0' and k == 'dma': gap(tw, 1)
        if 'exec' in self.lastw and self.lastw['exec'][1] in ('valu', 'trans'):
            tw = self.lastw['exec'][0]
            if k == 'mfma': gap(tw, 4)
            if I.dpp: gap(tw, 5)
            if I.op.startswith('v_read') or I.op.startswith('v_permlane'): gap(tw, 4)
        for r in I.wr:
            if r in self.lastw and self.lastw[r][1] == 'mfma' and k != 'mfma':
                W = self.lastw[r][2]
                gap(self.lastw[r][0], (8 if '32x32' in W.op else 4) + 4)
            if r in self.lastw and self.lastw[r][1] == 'mfma' and k == 'mfma' and not (I.srcc == self.lastw[r][2].wr):
                W = self.lastw[r][2]
                gap(self.lastw[r][0], (8 if '32x32' in W.op else 4) + 2)
            if isv and r in self.lastc: gap(self.lastc[r][0], self.lastc[r][1])
            if r in self.lastst and (isv or k in ('vld', 'dsr', 'mfma')): gap(self.lastst[r], 2)
        if need > 0: self.nop(need)
        t = self.t
        self._put(I.text)
        self.count[k] = self.count.get(k, 0) + 1
        for r in I.wr: self.lastw[r] = (t, k, I)
        if k == 'mfma':
            for r in I.srcc: self.lastc[r] = (t, 7 if '32x32' in I.op else 3)
        if k == 'vst' and I.wide:
            for r in I.rd:
                if r[0] in 'va': self.lastst[r] = t
        if k in ('vld', 'vst', 'dma'):
            self.vm.append((set(I.wr), I.tag))
            assert len(self.vm) <= 63 or True
        if k in ('dsr', 'dsw'):
            self.lg.append((set(I.wr), I.tag))
        if k == 'smem':
            self.smem_pending |= set(I.wr)
    def text(self): return '\n'.join(self.lines) + '\n'
```

```python
from emit import Emit

NKAP      = 78
ACT_OFF   = 0x0000000
ACT_TILE  = NKAP * 1024
WCAT_OFF  = 0x0A00000
QKV_OFF   = 0x0E00000
STATS_OFF = 0x1600000
KVP_OFF   = 0x1610000
PSZ       = 3072
FLAG_OFF  = 0x1700000
DBG_OFF   = 0x1800000
WS_SIZE   = 268435456
OOB       = 0x40000000
LOG2E     = 0x3fb8aa3b

NT, KS = 11, 20
XBASE = 0
XTILE = 8192
WBASE = NT * XTILE
WSLOTS = 4
WSLOT = 16384
MISC = WBASE + WSLOTS * WSLOT
K1_LDS = MISC + 8192
XHI = 45056

OPT = dict(off=2, cap=2, rot=False, nodma=False, nobar=False, notr=False, stamps=(), prefetch=True, trpos=4, tailgap=3)

S_X, S_W, S_WS, S_DBG = 4, 8, 12, 16
sWave, sStart, sTmp, sTmp2, sSoffW, sStride32, sM0W, sM0X, sSoff = 20, 21, 22, 23, 24, 25, 26, 27, 28
sSize, sType, sCg, sRange, sScale, sStatOff, sLo, sHi, sSt2 = 29, 30, 31, 32, 33, 34, 35, 36, 37
sBuf, sCol, sStr, sW1, sW2 = 38, 39, 50, 51, 72
sMask15, sPoll, sPc = 40, 44, 46
sPtr = 52
TABX = [52, 53, 54, 55, 56]
TABW = [57, 58, 59, 60, 61]
sRot = 62
sStamp = 74
S_R = 64
sRsrc, sRdst, sRadj, sRdelta = (90, 91, 92, 93), (94, 95, 96, 97), (98, 99, 100, 101), 71
vRa, vRst, vRld = (250, 251, 252, 253), 254, 255
aRep = 216
NJ, NJOB = 4, 780
S_R2 = S_WS
sM0tmp, sSoffW2 = 44, 45

def acc(j, t): return 16 * j + 4 * t
vX0 = 176
vOOB = 180
vOne = 181
vW = 182
vXd, vXd0 = 186, 187
vXr = 188
vWr = 196
vSt, vSt0, vStB, vStB0 = 198, 199, 200, 201
vStat = 202
vCs = 204
vT = 220
vLane, vN, vG = 244, 245, 246
vMean, vScl = 248, 249
aXf = 176
aStat = 192

def S(j): return max(0, j - OPT['off'])
def SMAX(): return S(NT - 1)
def NW(): return SMAX() + 1
def win(k, t): return 16 * (k % NW()) + 4 * t
def NSTEP(): return KS + SMAX()

class Stamps:
    def __init__(self, on, cap=14): self.on = on; self.names = []; self.cap = cap
    def __call__(self, e, name):
        if not self.on or name not in self.on: return
        i = len(self.names)
        if i >= self.cap: return
        self.names.append(name)
        e(f's_memtime s[{sStamp+2*i}:{sStamp+2*i+1}]')
    def dump(self, e):
        if not self.on: return
        e.waitcnt(lg=0)
        e(f's_memrealtime s[{sPoll}:{sPoll+1}]')
        e(f's_lshl_b32 s{sTmp}, s2, 2')
        e(f's_add_u32 s{sTmp}, s{sTmp}, s{sWave}')
        e(f's_lshl_b32 s{sTmp}, s{sTmp}, 7')
        e(f's_add_u32 s{sTmp}, s{sTmp}, {DBG_OFF}')
        e(f'v_lshlrev_b32 v250, 2, v{vLane}')
        e(f'v_mov_b32 v251, 0')
        e.waitcnt(lg=0)
        n = len(self.names)
        for i in range(n):
            e(f'v_writelane_b32 v251, s{sStamp+2*i}, {i}')
        e(f'v_writelane_b32 v251, s{sPoll}, 14')
        e(f'v_writelane_b32 v251, s73, 15')
        e(f'v_mov_b32 v253, {OOB}')
        e(f'v_cmp_gt_u32 vcc, 32, v{vLane}')
        e(f'v_cndmask_b32 v250, v253, v250, vcc')
        e(f'buffer_store_dword v251, v250, s[{S_WS}:{S_WS+3}], s{sTmp} offen')

def stats_loads(e):
    for m in range(5):
        e(f'buffer_load_dwordx2 v[{vT+2+2*m}:{vT+3+2*m}], v{vT+1}, s[{S_X}:{S_X+3}], 0 offen offset:{256*m}', tag=('statld', 0))

def stats_addr(e):
    e(f'''
    s_lshl_b32 s{sTmp}, s2, 3
    s_lshl_b32 s{sTmp2}, s{sWave}, 1
    s_add_u32 s{sTmp}, s{sTmp}, s{sTmp2}
    v_lshrrev_b32 v{vT}, 5, v{vLane}
    v_add_u32 v{vT}, s{sTmp}, v{vT}
    v_mul_u32_u24 v{vT+1}, 1280, v{vT}
    v_and_b32 v{vT+2}, 31, v{vLane}
    v_lshl_add_u32 v{vT+1}, v{vT+2}, 3, v{vT+1}
    v_lshlrev_b32 v{vT+22}, 3, v{vT}
    ''')

def stats_compute(e, mid=None):
    src = vT + 2
    u = 144
    for m in range(10):
        e(f'v_lshlrev_b32 v{u+2*m}, 16, v{src+m}')
        e(f'v_and_b32 v{u+2*m+1}, 0xffff0000, v{src+m}')
    s = vT + 12
    def allreduce32(r, t):
        for sh in (8, 4, 2, 1):
            e(f'v_add_f32_dpp v{r}, v{r}, v{r} row_ror:{sh} row_mask:0xf bank_mask:0xf')
        e(f'v_mov_b32 v{t}, v{r}')
        e(f'v_permlane16_swap_b32 v{r}, v{t}')
        e(f'v_add_f32 v{r}, v{r}, v{t}')
    def tree(op_first, op_acc):
        for c in range(4):
            e(op_first(u + 20 + c, u + c))
        for m in range(4, 20):
            e(op_acc(u + 20 + (m & 3), u + m))
    tree(lambda d, a: f'v_mov_b32 v{d}, v{a}', lambda d, a: f'v_add_f32 v{d}, v{d}, v{a}')
    e(f'v_add_f32 v{u+20}, v{u+20}, v{u+21}\nv_add_f32 v{u+22}, v{u+22}, v{u+23}\nv_add_f32 v{s}, v{u+20}, v{u+22}')
    allreduce32(s, s + 1)
    if mid: mid()
    e(f'v_mul_f32 v{s}, 0x3acccccd, v{s}')
    for m in range(20): e(f'v_sub_f32 v{u+m}, v{u+m}, v{s}')
    tree(lambda d, a: f'v_mul_f32 v{d}, v{a}, v{a}', lambda d, a: f'v_fmac_f32 v{d}, v{a}, v{a}')
    e(f'v_add_f32 v{u+20}, v{u+20}, v{u+21}\nv_add_f32 v{u+22}, v{u+22}, v{u+23}\nv_add_f32 v{s+2}, v{u+20}, v{u+22}')
    allreduce32(s + 2, s + 1)
    e(f'''
    v_mul_f32 v{s+2}, 0x3acccccd, v{s+2}
    v_cvt_pk_bf16_f32 v{s+3}, v{s}, v{s+2}
    v_lshlrev_b32 v{s+4}, 16, v{s+3}
    v_and_b32 v{s+2}, 0xffff0000, v{s+3}
    v_add_f32 v{s+2}, 0x3727c5ac, v{s+2}
    v_cvt_pk_bf16_f32 v{s+2}, v{s+2}, v{s+2}
    v_and_b32 v{s+2}, 0xffff0000, v{s+2}
    v_sqrt_f32 v{s+2}, v{s+2}
    s_nop 0
    v_cvt_pk_bf16_f32 v{s+2}, v{s+2}, v{s+2}
    v_and_b32 v{s+2}, 0xffff0000, v{s+2}
    v_rcp_f32 v{s+5}, v{s+2}
    v_and_b32 v{s+6}, 31, v{vLane}
    v_cmp_eq_u32 vcc, 0, v{s+6}
    v_mov_b32 v{s+7}, {OOB}
    v_cndmask_b32 v{s+6}, v{s+7}, v{vT+22}, vcc
    ''')
    e(f'buffer_store_dwordx2 v[{s+4}:{s+5}], v{s+6}, s[{S_WS}:{S_WS+3}], s{sStatOff} offen sc1', tag=('statst', 0))

def stats_signal(e):
    e(f'''
    s_lshr_b32 s{sTmp}, s2, 2
    s_lshl_b32 s{sTmp}, s{sTmp}, 2
    s_cmp_eq_u32 s{sWave}, 0
    s_cselect_b32 s{sTmp}, s{sTmp}, {OOB}
    v_mov_b32 v{vT+12}, s{sTmp}
    v_mov_b32 v{vT+13}, {OOB}
    v_cmp_eq_u32 vcc, 0, v{vLane}
    v_cndmask_b32 v{vT+12}, v{vT+13}, v{vT+12}, vcc
    v_mov_b32 v{vT+13}, 1
    ''')
    e(f'buffer_atomic_add v{vT+13}, v{vT+12}, s[{S_DBG}:{S_DBG+3}], 0 offen sc1', tag=('sig', 0))

def x_need(j, q): return S(j) + 4 * q - 2
def x_issue(j, q): return S(j) + 4 * q - 4
def w_need(k): return k - 2
def w_issue(k): return k - 4

def dma_x(j, q):
    slot = XBASE + j * XTILE + (q & 1) * 4096
    if j == 0:
        return [f's_add_u32 m0, s{sM0X}, {slot}',
                (f'buffer_load_dwordx4 v{vXd0}, s[{S_X}:{S_X+3}], s{TABX[q]} offen lds', ('dma', x_need(j, q)))]
    return [f's_add_u32 m0, s{sM0X}, {slot}', f's_add_u32 s{sSoff}, s{TABX[q]}, {(10 - j) * 16 * 1280}',
            (f'buffer_load_dwordx4 v{vXd}, s[{S_X}:{S_X+3}], s{sSoff} offen lds', ('dma', x_need(j, q)))]

def dma_w(k):
    g = [f's_add_u32 m0, s{sM0W}, {(k % WSLOTS) * WSLOT}',
         f's_mov_b32 s{sSoffW}, s{TABW[k >> 2]}' if k % 4 == 0 else f's_add_u32 s{sSoffW}, s{sSoffW}, s{sStride32}']
    for i in range(4):
        g.append((f'buffer_load_dwordx4 v{vW+i}, s[{S_W}:{S_W+3}], s{sSoffW} offen offset:{i*1024} lds', ('dma', w_need(k))))
    return g

def dmas_at(t):
    jobs = []
    for j in range(NT):
        for q in range(5):
            if x_issue(j, q) == t: jobs.append((x_need(j, q), 1, dma_x(j, q)))
    k = t + 4
    if 0 <= k < KS: jobs.append((w_need(k), 0, dma_w(k)))
    jobs.sort(key=lambda z: (z[0], z[1]))
    return [z[2] for z in jobs]

def repack_setup(e):
    gi, q, kap, b, u, hh, gg = sTmp, sTmp2, sSoff, sM0tmp, sSoffW2, 48, 49
    e(f'''
    s_mul_i32 s{gi}, s{sCg}, 12
    s_add_u32 s{gi}, s{gi}, s{sRange}
    s_cmp_lt_u32 s{gi}, 135
    s_cselect_b32 s{sRdelta}, 4, 1
    s_cselect_b32 s{u}, 2, 3
    s_cselect_b32 s{b}, 8, 0
    s_lshl_b32 s{sRdelta}, s{sRdelta}, 9
    s_add_u32 s{u}, s{u}, 7
    v_lshrrev_b32 v{vT+14}, 3, v{vLane}
    s_mul_i32 s{b}, s{b}, s{sWave}
    v_add_u32 v{vT+14}, s{b}, v{vT+14}
    v_mul_u32_u24 v{vT+14}, 1280, v{vT+14}
    v_and_b32 v{vT+15}, 7, v{vLane}
    v_lshl_add_u32 v{vRld}, v{vT+15}, 4, v{vT+14}
    v_lshlrev_b32 v{vRst}, 4, v{vLane}
    v_add_u32 v{vRst}, {WCAT_OFF}, v{vRst}
    v_lshlrev_b32 v{vT+14}, s{u}, v{vG}
    v_bfe_u32 v{vT+15}, v{vLane}, 2, 2
    v_lshl_add_u32 v{vT+14}, v{vT+15}, 7, v{vT+14}
    s_lshl_b32 s{b}, s{sW2}, 6
    s_add_u32 s{b}, s{b}, {WBASE}
    v_add_u32 v{vT+14}, s{b}, v{vT+14}
    v_and_b32 v{vT+15}, 3, v{vLane}
    s_lshl_b32 s{b}, s{sW1}, 3
    v_lshl_add_u32 v{vT+16}, v{vT+15}, 4, v{vT+14}
    v_add_u32 v{vT+16}, s{b}, v{vT+16}
    s_lshl_b32 s{b}, s{sW1}, 5
    v_lshl_add_u32 v{vT+17}, v{vT+15}, 3, v{vT+14}
    v_add_u32 v{vT+17}, s{b}, v{vT+17}
    ''')
    for n in range(NJ):
        e(f'''
        s_lshl_b32 s{q}, s{gi}, 2
        s_add_u32 s{q}, s{q}, {n}
        s_mul_i32 s{kap}, s{q}, 52429
        s_lshr_b32 s{kap}, s{kap}, 19
        s_mul_i32 s{b}, s{kap}, 10
        s_sub_u32 s{b}, s{q}, s{b}
        s_lshl_b32 s{u}, s{b}, 1
        s_add_u32 s{u}, s{u}, s{sW2}
        s_mul_i32 s{hh}, s{u}, 52429
        s_lshr_b32 s{hh}, s{hh}, 18
        s_mul_i32 s{hh}, s{hh}, 5
        s_sub_u32 s{u}, s{u}, s{hh}
        s_cmp_eq_u32 s{u}, 2
        s_cselect_b64 vcc, -1, 0
        v_cndmask_b32 v{vRa[n]}, v{vT+16}, v{vT+17}, vcc
        v_add_u32 v{vRa[n]}, {n*4096}, v{vRa[n]}
        s_lshl_b32 s{u}, s{b}, 2
        s_add_u32 s{u}, s{u}, s{sWave}
        s_mul_i32 s{u}, s{u}, {NKAP}
        s_add_u32 s{u}, s{u}, s{kap}
        s_lshl_b32 s{sRdst[n]}, s{u}, 10
        s_sub_u32 s{u}, s{kap}, 54
        s_lshl_b32 s{u}, s{u}, 2
        s_add_u32 s{u}, s{u}, s{sWave}
        s_mul_i32 s{hh}, s{u}, 43691
        s_lshr_b32 s{hh}, s{hh}, 17
        s_mul_i32 s{gg}, s{hh}, 3
        s_sub_u32 s{gg}, s{u}, s{gg}
        s_lshl_b32 s{gg}, s{gg}, 3
        s_and_b32 s{u}, s{hh}, 1
        s_lshl_b32 s{u}, s{u}, 2
        s_sub_u32 s{gg}, s{gg}, s{u}
        s_mul_i32 s{hh}, s{hh}, 20
        s_add_u32 s{hh}, s{hh}, s{gg}
        s_lshl_b32 s{u}, s{kap}, 5
        s_cmp_ge_u32 s{kap}, 54
        s_cselect_b32 s{sRadj[n]}, s{gg}, 0
        s_cselect_b32 s{u}, s{hh}, s{u}
        s_mul_i32 s{u}, s{u}, 1280
        s_lshl_b32 s{b}, s{b}, 7
        s_add_u32 s{sRsrc[n]}, s{u}, s{b}
        s_cmp_ge_u32 s{q}, {NJOB}
        s_cselect_b32 s{sRsrc[n]}, {OOB}, s{sRsrc[n]}
        s_cselect_b32 s{sRdst[n]}, {OOB}, s{sRdst[n]}
        ''')

def repack_dma():
    it = [[f'v_lshrrev_b32 v{vT+3}, 3, v{vLane}']]
    for n in range(NJ):
        it.append([f'v_add_u32 v{vT+4}, s{sRadj[n]}, v{vT+3}', f'v_cmp_gt_u32 vcc, 20, v{vT+4}',
                   f'v_cndmask_b32 v{vT+5+n}, v{vOOB}, v{vRld}, vcc'])
        it.append([f's_add_u32 m0, s{sM0X}, {WBASE + n*4096}',
                   (f'buffer_load_dwordx4 v{vT+5+n}, s[{S_R}:{S_R+3}], s{sRsrc[n]} offen lds', ('dma', 18))])
    return it

def repack_reads():
    it = []
    for n in range(NJ):
        r = aRep + 4 * n
        it.append([f'v_add_u32 v{vT+2}, s{sRdelta}, v{vRa[n]}'])
        it.append([(f'ds_read_b64_tr_b16 a[{r}:{r+1}], v{vRa[n]}', ('rtr', n))])
        it.append([(f'ds_read_b64_tr_b16 a[{r+2}:{r+3}], v{vT+2}', ('rtr', n))])
    return it

def repack_stores():
    return [[(f'buffer_store_dwordx4 a[{aRep+4*n}:{aRep+4*n+3}], v{vRst}, s[{S_R2}:{S_R2+3}], s{sRdst[n]} offen sc1', ('rst', n))] for n in range(NJ)]

def poison(e=None):
    r = vT + 10
    it = [[f'v_mov_b32 v{r+i}, -1'] for i in range(4)]
    it += [[f's_mul_i32 s{sTmp}, s2, {PSZ}'], [f's_add_u32 s{sTmp}, s{sTmp}, {KVP_OFF}'], [f's_lshl_b32 s{sTmp2}, s{sWave}, 10'],
           [f's_add_u32 s{sTmp}, s{sTmp}, s{sTmp2}'], [f's_cmp_eq_u32 s{sWave}, 3'], [f's_cselect_b32 s{sTmp}, {OOB}, s{sTmp}'],
           [f'v_lshlrev_b32 v{r+4}, 4, v{vLane}'],
           [(f'buffer_store_dwordx4 v[{r}:{r+3}], v{r+4}, s[{S_WS}:{S_WS+3}], s{sTmp} offen sc1', ('pz', 0))]]
    return it

def tr_reads(k):
    items = []
    if not (0 <= k < KS): return items
    base = (k % WSLOTS) * WSLOT
    for t in range(4):
        i, b = t >> 1, t & 1
        for h in range(2):
            items.append([(f'ds_read_b64_tr_b16 a[{win(k,t)+2*h}:{win(k,t)+2*h+1}], v{vWr+i} offset:{base + b*8192 + h*512}', ('tr', k))])
    return items

def x_read(j, k, dst):
    off = XBASE + j * XTILE + ((k >> 2) & 1) * 4096
    hi = off >= XHI
    return (f'ds_read_b128 {dst}, v{vXr + 4*hi + (k & 3)} offset:{off - (XHI if hi else 0)}', ('xr', j, k))

def epi_common(j):
    return [[f'v_accvgpr_read_b32 v{vMean}, a{aStat+2*j}'], [f'v_accvgpr_read_b32 v{vScl}, a{aStat+2*j+1}']]

def epi_F(j):
    it = epi_common(j)
    it.append([f'v_mul_f32 v{vScl}, v{vScl}, v{vScl}'])
    o = vT + (j & 1) * 4
    for i in range(2):
        G, U = acc(j, 2*i), acc(j, 2*i+1)
        for r in range(4):
            it.append([f'v_fma_f32 v{G+r}, -v{vMean}, v{vCs+8*i+r}, v{G+r}'])
            it.append([f'v_fma_f32 v{U+r}, -v{vMean}, v{vCs+8*i+4+r}, v{U+r}'])
        for r in range(4):
            it.append([f'v_mul_f32 v{G+r}, v{G+r}, v{U+r}'])
        for r in range(4):
            it.append([f'v_mul_f32 v{G+r}, v{G+r}, v{vScl}'])
        it.append([f'v_cvt_pk_bf16_f32 v{o+2*i}, v{G}, v{G+1}'])
        it.append([f'v_cvt_pk_bf16_f32 v{o+2*i+1}, v{G+2}, v{G+3}'])
    it.append([f's_mov_b32 s{sTmp}, {(10-j)*ACT_TILE}'])
    it.append([(f'buffer_store_dwordx4 v[{o}:{o+3}], v{vSt0 if j == 0 else vSt}, s[{S_WS}:{S_WS+3}], s{sTmp} offen sc1', ('st', j))])
    return it

def epi_P(j):
    it = epi_common(j)
    it.append([f'v_mul_f32 v{vScl}, s{sScale}, v{vScl}'])
    for b in range(2):
        o = vT + 8 + (((2*j + b) % 3) * 4)
        for i in range(2):
            A = acc(j, 2*i + b)
            for r in range(4):
                it.append([f'v_fma_f32 v{A+r}, -v{vMean}, v{vCs+8*i+4*b+r}, v{A+r}'])
            for r in range(4):
                it.append([f'v_mul_f32 v{A+r}, v{A+r}, v{vScl}'])
            it.append([f'v_cvt_pk_bf16_f32 v{o+2*i}, v{A}, v{A+1}'])
            it.append([f'v_cvt_pk_bf16_f32 v{o+2*i+1}, v{A+2}, v{A+3}'])
        reg = (vStB0 if j == 0 else vStB) if b else (vSt0 if j == 0 else vSt)
        it.append([f's_mov_b32 s{sTmp}, {(10-j)*256}'])
        it.append([(f'buffer_store_dwordx4 v[{o}:{o+3}], v{reg}, s[{S_WS}:{S_WS+3}], s{sTmp} offen sc1', ('st', j))])
    return it

def cs_extract():
    return [[f'v_mov_b32_dpp v{vCs+4*t+r}, v{acc(0,t)+r} row_newbcast:15 row_mask:0xf bank_mask:0xf'] for t in range(4) for r in range(4)]

def emit_item(e, it):
    for x in it:
        if isinstance(x, tuple): e(x[0], tag=x[1])
        elif callable(x): x(e)
        else: e(x)

class Seq:
    def __init__(self):
        self.s = [(t, j) for t in range(NSTEP()) for j in range(NT - 1, -1, -1) if 0 <= t - S(j) < KS]
        self.ring = [x for x in self.s if x[1] != 0]
        self.idx = {x: n for n, x in enumerate(self.ring)}
    def reg(self, t, j):
        if j == 0: return f'v[{vX0}:{vX0+3}]'
        n = self.idx[(t, j)] % 4
        return f'a[{aXf+4*n}:{aXf+4*n+3}]'
    def first(self, t):
        return min([self.idx[x] for x in self.ring if x[0] == t] + [10**9])

def run_step(e, t, seq, state, flex, D=2):
    cap = OPT['cap']
    tiles = [j for (tt, j) in seq.s if tt == t]
    mf = []
    for j in tiles:
        k = t - S(j)
        for tt in range(4):
            c = '0' if k == 0 else f'v[{acc(j,tt)}:{acc(j,tt)+3}]'
            mf.append(f'v_mfma_f32_16x16x32_bf16 v[{acc(j,tt)}:{acc(j,tt)+3}], a[{win(k,tt)}:{win(k,tt)+3}], {seq.reg(t,j)}, {c}')
    n = len(mf)
    fixed = {i: [] for i in range(n + 1)}
    used = [0] * (n + 1)
    for g in range(0, n, 4): used[g] += 1
    def put(i, it): fixed[i].append(it); used[i] += len(it)
    if 0 in tiles:
        put(1 if n > 4 else 0, [x_read(0, t, f'v[{vX0}:{vX0+3}]')])
        pos0 = n - 4
        for r in range(4):
            p = pos0 - 3 - 2 * (3 - r) if pos0 >= 12 else pos0
            put(p, [f'v_cndmask_b32 v{vX0+r}, v{vX0+r}, v{vOne}, s[{sMask15}:{sMask15+1}]'])
    pos = 0
    for j in tiles:
        if j != 0:
            q = seq.idx[(t, j)]
            first = 1
            while state['xr'] <= q + D and state['xr'] < len(seq.ring):
                tt, jj = seq.ring[state['xr']]
                if tt > t + 1: break
                put(pos if state['xr'] <= q else pos + first, [x_read(jj, tt - S(jj), seq.reg(tt, jj))])
                first = min(first + 1, 3)
                state['xr'] += 1
        pos += 4
    while state['xr'] < len(seq.ring) and seq.ring[state['xr']][0] == t + 1 and state['xr'] <= seq.first(t + 1) + D - 1:
        tt, jj = seq.ring[state['xr']]
        put(n, [x_read(jj, tt - S(jj), seq.reg(tt, jj))]); state['xr'] += 1
    fl = []
    for lo, it in flex:
        if any(callable(y) for y in it): fl.append((lo, it))
        else:
            for y in it: fl.append((lo, [y]))
    total = len(fl)
    place = {i: [] for i in range(n + 1)}
    left = []
    last = max(n - 1 - (OPT['tailgap'] if t < KS else 0), 0)
    room = sum(max(cap - used[x], 0) for x in range(last + 1))
    step = (last + 1) / max(min(total, room), 1)
    cur = 0.0; i = 0
    for lo, it in fl:
        if left: left.append((0, it)); continue
        g = max(int(cur), lo, i)
        cand = [x for x in range(g, min(g + 2, last + 1)) if used[x] == 0]
        if not cand: cand = [x for x in range(g, last + 1) if used[x] < cap]
        if cand: g = cand[0]
        elif t >= KS: left.append((0, it)); continue
        else: g = last
        place[g].append(it); used[g] += len(it); i = g
        cur += step
    for g in range(n):
        for it in fixed[g]: emit_item(e, it)
        for it in place[g]: emit_item(e, it)
        e(mf[g])
    for it in fixed[n]: emit_item(e, it)
    return left

def k1(name, dbg=False):
    e = Emit()
    st = Stamps(OPT['stamps'] if dbg else (), cap=8)
    last_dma = max([x_need(j, 4) for j in range(NT)] + [w_need(KS - 1)])
    e.raw(f'.globl {name}\n.p2align 8\n.type {name},@function\n{name}:')
    e(f'''
    s_cmp_ge_u32 s2, 256
    s_cbranch_scc1 L_{name}_end
    s_load_dwordx16 s[{sPtr}:{sPtr+15}], s[0:1], 0
    s_load_dwordx4 s[{sPtr+16}:{sPtr+19}], s[0:1], 64
    ''')
    if dbg:
        e(f's_memrealtime s[{sPoll}:{sPoll+1}]')
    st(e, 'start')
    e.smem_pending = set()
    e(f'''
    v_and_b32 v{vLane}, 63, v0
    v_lshrrev_b32 v{vT}, 6, v0
    v_and_b32 v{vN}, 15, v{vLane}
    v_readfirstlane_b32 s{sWave}, v{vT}
    v_lshrrev_b32 v{vG}, 4, v{vLane}
    ''')
    if OPT['prefetch']:
        e(f'''
        s_getpc_b64 s[{sPc}:{sPc+1}]
        s_lshr_b32 s{sTmp}, s2, 3
        s_lshl_b32 s{sTmp}, s{sTmp}, 10
        v_and_b32 v{vT+20}, 7, v{vLane}
        v_lshlrev_b32 v{vT+20}, 7, v{vT+20}
        v_add_u32 v{vT+20}, s{sTmp}, v{vT+20}
        global_load_dword v{vT+21}, v{vT+20}, s[{sPc}:{sPc+1}]
        ''')
    e(f'''
    s_and_b32 s{sTmp}, s2, 7
    s_lshr_b32 s{sTmp2}, s2, 3
    s_lshr_b32 s{sCg}, s{sTmp}, 1
    s_lshl_b32 s{sCg}, s{sCg}, 5
    s_add_u32 s{sTmp2}, s{sTmp2}, s{sCg}
    s_and_b32 s{sTmp}, s{sTmp}, 1
    s_mul_i32 s{sCg}, s{sTmp2}, 43691
    s_lshr_b32 s{sCg}, s{sCg}, 18
    s_mul_i32 s{sRange}, s{sCg}, 6
    s_sub_u32 s{sRange}, s{sTmp2}, s{sRange}
    s_mul_i32 s{sTmp}, s{sTmp}, 6
    s_add_u32 s{sRange}, s{sRange}, s{sTmp}
    s_mul_i32 s{sStart}, s{sRange}, 172
    s_max_u32 s{sTmp}, s{sRange}, 8
    s_sub_u32 s{sTmp}, s{sTmp}, 8
    s_lshl_b32 s{sTmp}, s{sTmp}, 2
    s_sub_u32 s{sStart}, s{sStart}, s{sTmp}
    s_and_b32 s{sW1}, s{sWave}, 1
    s_lshr_b32 s{sW2}, s{sWave}, 1
    ''')
    e(f'''
    s_cmp_lt_u32 s{sCg}, 13
    s_cbranch_scc1 L_{name}_srcF
    s_cmp_eq_u32 s{sCg}, 13
    s_cbranch_scc1 L_{name}_srcM
    s_mov_b32 s{sBuf}, 2
    s_sub_u32 s{sCol}, s{sCg}, 14
    s_lshl_b32 s{sCol}, s{sCol}, 8
    s_lshl_b32 s{sTmp}, s{sWave}, 6
    s_add_u32 s{sCol}, s{sCol}, s{sTmp}
    s_mov_b32 s{sType}, 1
    s_branch L_{name}_srcdone
    L_{name}_srcF:
    s_mov_b32 s{sBuf}, s{sW2}
    s_lshl_b32 s{sCol}, s{sCg}, 7
    s_lshl_b32 s{sTmp}, s{sW1}, 6
    s_add_u32 s{sCol}, s{sCol}, s{sTmp}
    s_mov_b32 s{sType}, 0
    s_branch L_{name}_srcdone
    L_{name}_srcM:
    s_lshl_b32 s{sTmp}, s{sW2}, 6
    s_add_u32 s{sTmp}, s{sTmp}, 1792
    s_cmp_eq_u32 s{sW1}, 1
    s_cselect_b32 s{sCol}, s{sTmp}, 1664
    s_cselect_b32 s{sBuf}, 2, s{sW2}
    s_mov_b32 s{sType}, s{sW2}
    L_{name}_srcdone:
    s_mov_b32 s{sStr}, 3456
    s_cmp_eq_u32 s{sBuf}, 2
    s_cselect_b32 s{sStr}, 3840, s{sStr}
    s_lshl_b32 s{sStride32}, s{sStr}, 5
    ''')
    e(f'''
    v_lshrrev_b32 v{vT+14}, 3, v{vLane}
    v_mul_lo_u32 v{vT+15}, s{sStr}, v{vT+14}
    v_bfe_u32 v{vT+17}, v{vLane}, 1, 2
    v_bfe_u32 v{vT+18}, v{vLane}, 4, 1
    v_and_b32 v{vT+19}, 1, v{vLane}
    v_lshl_add_u32 v{vT+15}, v{vT+19}, 4, v{vT+15}
    s_lshl_b32 s{sTmp}, s{sCol}, 1
    v_add_u32 v{vT+15}, s{sTmp}, v{vT+15}
    v_xor_b32 v{vT+17}, v{vT+17}, v{vT+18}
    v_lshl_add_u32 v{vW}, v{vT+17}, 5, v{vT+15}
    v_xor_b32 v{vT+17}, 2, v{vT+17}
    v_lshl_add_u32 v{vW+1}, v{vT+17}, 5, v{vT+15}
    s_lshl_b32 s{sTmp}, s{sStr}, 3
    s_sub_u32 s{sTmp}, s{sTmp}, 1024
    v_add_u32 v{vW+1}, s{sTmp}, v{vW+1}
    s_lshl_b32 s{sTmp}, s{sTmp}, 1
    v_add_u32 v{vW+2}, s{sTmp}, v{vW}
    v_add_u32 v{vW+3}, s{sTmp}, v{vW+1}
    ''')
    e(f'''
    s_lshl_b32 s{sTmp}, s{sWave}, 2
    v_add_u32 v{vT+15}, s{sTmp}, v{vG}
    v_xor_b32 v{vT+17}, v{vN}, v{vT+15}
    v_add_u32 v{vT+15}, s{sStart}, v{vT+15}
    v_mul_u32_u24 v{vT+15}, 1280, v{vT+15}
    v_lshl_add_u32 v{vXd}, v{vT+17}, 4, v{vT+15}
    v_add_u32 v{vXd0}, {160*1280}, v{vXd}
    s_lshl_b32 s{sM0X}, s{sWave}, 10
    s_lshl_b32 s{sM0W}, s{sWave}, 12
    s_add_u32 s{sM0W}, s{sM0W}, {WBASE}
    ''')
    stats_addr(e)
    pX, pQKV, pG, pU, pDbg, pWs = sPtr, sPtr + 2, sPtr + 8, sPtr + 10, sPtr + 16, sPtr + 18
    pWo, pDown = sPtr + 4, sPtr + 12
    e.raw('  s_waitcnt lgkmcnt(0)')
    if dbg: e(f's_mov_b32 s73, s{sPoll}')
    st(e, 'karg')
    e(f'''
    s_mov_b32 s{S_X}, s{pX}
    s_mov_b32 s{S_X+1}, s{pX+1}
    s_mov_b32 s{S_X+2}, {2048*1280}
    s_mov_b32 s{S_X+3}, 0x20000
    ''')
    if not OPT.get('statlate'): stats_loads(e)
    e(f'''
    s_cmp_eq_u32 s{sBuf}, 0
    s_cselect_b32 s{S_W}, s{pG}, s{pU}
    s_cselect_b32 s{S_W+1}, s{pG+1}, s{pU+1}
    s_cmp_eq_u32 s{sBuf}, 2
    s_cselect_b32 s{S_W}, s{pQKV}, s{S_W}
    s_cselect_b32 s{S_W+1}, s{pQKV+1}, s{S_W+1}
    s_mul_i32 s{S_W+2}, s{sStr}, 640
    s_mov_b32 s{S_W+3}, 0x20000
    s_mov_b32 s{S_WS}, s{pWs}
    s_mov_b32 s{S_WS+1}, s{pWs+1}
    s_mov_b32 s{S_WS+2}, {WS_SIZE}
    s_mov_b32 s{S_WS+3}, 0x20000
    s_mov_b32 s{S_DBG}, s{pDbg}
    s_mov_b32 s{S_DBG+1}, s{pDbg+1}
    s_mov_b32 s{S_DBG+2}, 256
    s_mov_b32 s{S_DBG+3}, 0x20000
    s_mov_b32 s{sStatOff}, {STATS_OFF}
    s_mul_i32 s{sTmp2}, s{sCg}, 12
    s_add_u32 s{sTmp2}, s{sTmp2}, s{sRange}
    s_cmp_lt_u32 s{sTmp2}, 135
    s_cselect_b32 s{S_R}, s{pDown}, s{pWo}
    s_cselect_b32 s{S_R+1}, s{pDown+1}, s{pWo+1}
    s_mov_b32 s{S_R+2}, {1728*1280}
    s_cselect_b32 s{S_R+2}, s{S_R+2}, {640*1280}
    s_mov_b32 s{S_R+3}, 0x20000
    s_cmp_ge_u32 s{sCg}, 21
    s_cbranch_scc1 L_{name}_spare
    ''')
    vm_at_spare = list(e.vm)
    if OPT['rot']:
        e(f'''
        s_add_u32 s{sRot}, s{sCg}, s{sRange}
        s_mul_i32 s{sTmp}, s{sRot}, 52429
        s_lshr_b32 s{sTmp}, s{sTmp}, 18
        s_mul_i32 s{sTmp}, s{sTmp}, 5
        s_sub_u32 s{sRot}, s{sRot}, s{sTmp}
        ''')
    else: e(f's_mov_b32 s{sRot}, 0')
    for q in range(5):
        if q: e(f's_add_u32 s{sRot}, s{sRot}, 1\ns_cmp_eq_u32 s{sRot}, 5\ns_cselect_b32 s{sRot}, 0, s{sRot}')
        e(f's_lshl_b32 s{TABX[q]}, s{sRot}, 8')
        e(f's_mul_i32 s{sTmp}, s{sRot}, s{sStride32}\ns_lshl_b32 s{TABW[q]}, s{sTmp}, 2')
    pro = []
    for t in range(-4, 0): pro += dmas_at(t)
    pro.sort(key=lambda g: g[-1][1][1])
    def issue(upto):
        while pro and pro[0][-1][1][1] <= upto: emit_item(e, pro.pop(0))
    issue(-2)
    if OPT.get('statlate'): stats_loads(e)
    st(e, 'issued')
    e(f'''
    v_lshrrev_b32 v{vT+14}, 2, v{vN}
    v_lshlrev_b32 v{vT+14}, 10, v{vT+14}
    v_and_b32 v{vT+15}, 3, v{vN}
    v_lshl_add_u32 v{vT+14}, v{vT+15}, 8, v{vT+14}
    v_xor_b32 v{vT+15}, v{vG}, v{vN}
    v_lshl_add_u32 v{vXr}, v{vT+15}, 4, v{vT+14}
    v_xor_b32 v{vXr+1}, 64, v{vXr}
    v_xor_b32 v{vXr+2}, 128, v{vXr}
    v_xor_b32 v{vXr+3}, 192, v{vXr}
    v_add_u32 v{vXr+4}, {XHI}, v{vXr}
    v_add_u32 v{vXr+5}, {XHI}, v{vXr+1}
    v_add_u32 v{vXr+6}, {XHI}, v{vXr+2}
    v_add_u32 v{vXr+7}, {XHI}, v{vXr+3}
    v_bfe_u32 v{vT+14}, v{vLane}, 2, 2
    v_and_b32 v{vT+15}, 3, v{vLane}
    v_lshl_add_u32 v{vT+16}, v{vG}, 3, v{vT+14}
    v_lshlrev_b32 v{vT+16}, 7, v{vT+16}
    s_lshl_b32 s{sTmp}, s{sW2}, 12
    s_add_u32 s{sTmp}, s{sTmp}, {WBASE}
    v_add_u32 v{vT+16}, s{sTmp}, v{vT+16}
    v_lshrrev_b32 v{vT+17}, 1, v{vT+14}
    v_and_b32 v{vT+18}, 1, v{vG}
    v_lshl_or_b32 v{vT+17}, v{vT+18}, 1, v{vT+17}
    s_lshl_b32 s{sTmp}, s{sW1}, 1
    s_cmp_eq_u32 s{sType}, 0
    s_cbranch_scc0 L_{name}_wrP
    v_xor_b32 v{vT+18}, s{sTmp}, v{vT+17}
    v_lshl_add_u32 v{vT+19}, v{vT+18}, 5, v{vT+16}
    v_lshl_add_u32 v{vWr}, v{vT+15}, 3, v{vT+19}
    v_xor_b32 v{vT+18}, 1, v{vT+18}
    v_lshl_add_u32 v{vT+19}, v{vT+18}, 5, v{vT+16}
    v_lshl_add_u32 v{vWr+1}, v{vT+15}, 3, v{vT+19}
    s_branch L_{name}_wrdone
    L_{name}_wrP:
    v_lshrrev_b32 v{vT+18}, 1, v{vT+15}
    v_or_b32 v{vT+18}, s{sTmp}, v{vT+18}
    v_xor_b32 v{vT+18}, v{vT+18}, v{vT+17}
    v_lshl_add_u32 v{vT+19}, v{vT+18}, 5, v{vT+16}
    v_and_b32 v{vT+18}, 1, v{vT+15}
    v_lshl_add_u32 v{vWr}, v{vT+18}, 4, v{vT+19}
    v_add_u32 v{vWr+1}, 8, v{vWr}
    L_{name}_wrdone:
    ''')
    issue(-1)
    e(f'''
    v_mov_b32 v{vOOB}, {OOB}
    v_add_u32 v{vT+14}, s{sStart}, v{vN}
    v_lshlrev_b32 v{vStat}, 3, v{vT+14}
    s_mov_b32 s{sSize}, 168
    s_cmp_lt_u32 s{sRange}, 8
    s_cselect_b32 s{sSize}, 172, s{sSize}
    s_sub_u32 s{sTmp}, s{sSize}, 160
    v_cmp_gt_u32 s[{sPoll}:{sPoll+1}], s{sTmp}, v{vN}
    s_cmp_eq_u32 s{sType}, 0
    s_cbranch_scc0 L_{name}_stP
    s_lshl_b32 s{sTmp}, s{sCg}, 2
    s_add_u32 s{sTmp}, s{sTmp}, s{sWave}
    s_lshl_b32 s{sTmp}, s{sTmp}, 10
    s_add_u32 s{sTmp}, s{sTmp}, {ACT_OFF}
    v_lshrrev_b32 v{vT+15}, 4, v{vT+14}
    s_mov_b32 s{sTmp2}, {ACT_TILE}
    v_mul_lo_u32 v{vT+15}, s{sTmp2}, v{vT+15}
    v_and_b32 v{vT+16}, 15, v{vT+14}
    v_lshl_add_u32 v{vT+16}, v{vG}, 4, v{vT+16}
    v_lshl_add_u32 v{vT+15}, v{vT+16}, 4, v{vT+15}
    v_add_u32 v{vSt}, s{sTmp}, v{vT+15}
    v_mov_b32 v{vStB}, v{vSt}
    s_branch L_{name}_stdone
    L_{name}_stP:
    s_sub_u32 s{sTmp}, s{sCg}, 14
    s_lshl_b32 s{sTmp}, s{sTmp}, 8
    s_lshl_b32 s{sTmp2}, s{sW2}, 6
    s_add_u32 s{sTmp}, s{sTmp}, s{sTmp2}
    s_cmp_eq_u32 s{sCg}, 13
    s_cselect_b32 s{sTmp}, 1792, s{sTmp}
    s_cselect_b32 s{sSt2}, 64, 128
    s_lshl_b32 s{sTmp2}, s{sW1}, 5
    s_add_u32 s{sTmp}, s{sTmp}, s{sTmp2}
    s_cmp_lt_u32 s{sTmp}, 1280
    s_cselect_b32 s{sScale}, {LOG2E}, 0x3f800000
    s_lshr_b32 s{sTmp}, s{sTmp}, 3
    v_add_u32 v{vT+15}, s{sTmp}, v{vG}
    v_lshlrev_b32 v{vT+15}, 15, v{vT+15}
    v_lshl_add_u32 v{vT+15}, v{vT+14}, 4, v{vT+15}
    v_add_u32 v{vSt}, {QKV_OFF}, v{vT+15}
    s_lshl_b32 s{sSt2}, s{sSt2}, 12
    v_add_u32 v{vStB}, s{sSt2}, v{vSt}
    L_{name}_stdone:
    v_cndmask_b32 v{vSt0}, v{vOOB}, v{vSt}, s[{sPoll}:{sPoll+1}]
    v_cndmask_b32 v{vStB0}, v{vOOB}, v{vStB}, s[{sPoll}:{sPoll+1}]
    v_mov_b32 v{vOne}, 0x3f803f80
    v_cmp_eq_u32 s[{sMask15}:{sMask15+1}], 15, v{vN}
    s_lshr_b32 s{sLo}, s{sStart}, 5
    s_add_u32 s{sHi}, s{sStart}, s{sSize}
    s_sub_u32 s{sHi}, s{sHi}, 1
    s_lshr_b32 s{sHi}, s{sHi}, 5
    ''')
    issue(0)
    repack_setup(e)
    st(e, 'setup')
    stats_compute(e, lambda: issue(1))
    st(e, 'stats')
    assert not pro
    e.wait_vm_tag(lambda tg: tg[0] == 'dma' and tg[1] <= -2)
    e.barrier()
    st(e, 'data0')
    seq = Seq()
    state = {'xr': 0}
    for it in tr_reads(0): emit_item(e, it)
    while state['xr'] < 2 and seq.ring[state['xr']][0] == 0:
        tt, jj = seq.ring[state['xr']]
        emit_item(e, [x_read(jj, 0, seq.reg(tt, jj))]); state['xr'] += 1
    e.wait_vm_tag(lambda tg: tg[0] == 'dma' and tg[1] <= -1)
    e.wait_lg_tag(lambda tg: tg[0] == 'tr')
    e.barrier()
    st(e, 'step-1')

    def end_step(e, t):
        if t > last_dma: return
        e.wait_vm_tag(lambda tg: (tg[0] == 'dma' and tg[1] <= t) or (tg[0] == 'statst' and t == 2))
        e.wait_lg_tag(lambda tg: tg[0] == 'tr')
        if not (OPT['nobar'] and 10 <= t < 19): e.barrier()

    def epi_due(t):
        return [j for j in range(NT) if S(j) + KS == t]

    def tail(e, state, epi, stl):
        carry = []
        for t in range(KS, NSTEP()):
            flex = list(carry)
            if t == KS: flex += [(0, it) for it in cs_extract()]
            for j in epi_due(t): flex += [(0, it) for it in epi(j)]
            flex = [(0, g) for g in dmas_at(t)] + flex
            carry = run_step(e, t, seq, state, flex)
            end_step(e, t)
            stl(e, f's{t}')
        for it in carry: emit_item(e, it[1])
        stl(e, 'carry')
        for j in epi_due(NSTEP()):
            for it in epi(j): emit_item(e, it)
        stl(e, 'end')
        stl.dump(e)
        e('s_endpgm')

    tpoll = 14
    for t in range(0, KS):
        dm = [(0, g) for g in dmas_at(t)]
        trs = [(OPT['trpos'] if t + 1 >= NW() else 0, it) for it in tr_reads(t + 1)]
        if OPT['nodma'] and 10 <= t: dm = []
        if OPT['notr'] and 10 <= t: trs = []
        flex = []
        a, b = list(trs), list(dm)
        if OPT.get('order') == 'dm_first': flex = b + a
        else:
            while a or b:
                if b: flex.append(b.pop(0))
                for _ in range(3):
                    if a: flex.append(a.pop(0))
        if t == 16: flex += [(0, g) for g in repack_dma()]
        if t == 19:
            flex += [(0, g) for g in repack_reads()] + [(16, g) for g in repack_stores()]
        if t == 17: flex += [(0, g) for g in poison()]
        if t == tpoll:
            flex.append((0, [f'v_lshlrev_b32 v{vT}, 2, v{vLane}',
                             (f'buffer_load_dword v{vT+1}, v{vT}, s[{S_DBG}:{S_DBG+3}], 0 offen sc1', ('poll', t))]))
        if t == tpoll + 2:
            def check(e):
                e(f's_mov_b32 s{sTmp2}, 0')
                e(f'''
                L_{name}_poll:
                v_cmp_eq_u32 vcc, 4, v{vT+1}
                v_cmp_gt_u32 s[{sPoll}:{sPoll+1}], s{sLo}, v{vLane}
                s_or_b64 vcc, vcc, s[{sPoll}:{sPoll+1}]
                v_cmp_lt_u32 s[{sPoll}:{sPoll+1}], s{sHi}, v{vLane}
                s_or_b64 vcc, vcc, s[{sPoll}:{sPoll+1}]
                s_cmp_eq_u64 vcc, -1
                s_cbranch_scc1 L_{name}_pollok
                s_add_u32 s{sTmp2}, s{sTmp2}, 1
                s_cmp_gt_u32 s{sTmp2}, 200000
                s_cbranch_scc1 L_{name}_pollok
                ''')
                e(f'buffer_load_dword v{vT+1}, v{vT}, s[{S_DBG}:{S_DBG+3}], 0 offen sc1')
                e.raw('  s_waitcnt vmcnt(0)')
                e(f's_branch L_{name}_poll')
                e.vm.pop()
                e.label(f'L_{name}_pollok')
            flex.append((8, [check]))
            for j in range(NT):
                flex.append((8, [(f'buffer_load_dwordx2 a[{aStat+2*j}:{aStat+2*j+1}], v{vStat}, s[{S_WS}:{S_WS+3}], s{sStatOff} offen offset:{(10-j)*128} sc1', ('statrd', j))]))
        carry = run_step(e, t, seq, state, flex)
        assert not carry
        end_step(e, t)
        if t == 2: stats_signal(e)
        st(e, f's{t}')
    e(f's_cmp_eq_u32 s{sType}, 0')
    e(f's_cbranch_scc0 L_{name}_tailP')
    eP = e.clone(); sP = dict(state)
    import copy
    stP = copy.deepcopy(st)
    tail(e, state, epi_F, st)
    eP.label(f'L_{name}_tailP')
    tail(eP, sP, epi_P, stP)
    e.lines += eP.lines
    eS = Emit()
    eS.label(f'L_{name}_spare')
    eS.vm = vm_at_spare
    eS(f'''
    s_and_b32 s{sTmp}, s{sRange}, 1
    s_cmp_ge_u32 s{sRange}, 6
    s_cselect_b32 s{sTmp2}, 2, 0
    s_add_u32 s{sTmp}, s{sTmp}, s{sTmp2}
    s_lshl_b32 s{sTmp}, s{sTmp}, 10
    s_add_u32 s{sTmp}, s{sTmp}, {FLAG_OFF}
    v_lshlrev_b32 v1, 2, v0
    v_mov_b32 v2, 0
    ''')
    eS(f'buffer_store_dword v2, v1, s[{S_WS}:{S_WS+3}], s{sTmp} offen sc1')
    if OPT.get('statlate'): stats_loads(eS)
    stats_compute(eS)
    for it in poison(): emit_item(eS, it)
    eS.wait_all()
    eS.barrier()
    stats_signal(eS)
    eS.label(f'L_{name}_end')
    eS('s_endpgm')
    e.lines += eS.lines
    e.stamp_names = st.names
    return e

if __name__ == '__main__':
    import sys
    OPT['stamps'] = ('start', 'karg', 'issued', 'setup', 'stats', 'data0', 'step-1', 's0', 's4', 's9', 's19', 'end')
    e = k1('k1_kernel', dbg=True)
    print(e.text())
    print(e.count, e.nops, e.waits, file=sys.stderr)
```

```python
from emit import Emit
from gen_k1 import ACT_OFF, ACT_TILE, WCAT_OFF, QKV_OFF, KVP_OFF, PSZ, FLAG_OFF, DBG_OFF, WS_SIZE, OOB, Stamps

PIECE = 2048 * 16
PSTR = 4160
KBUF = 0
VBUF = KBUF + 3 * PSTR
KVA = 29184
SYNC = 31744
RED = 32768
K2_LDS = RED + 12 * 5120
NH, NO = 14, 6
NIT = NH + NO
ACC_OFF = 148

OPT = dict(prio=None, swap=False, stamps=(), astamps=(), ofl='sc1', outfl='sc1', rot='none', dist=2, first=1, pollat=11, xat=8)

S_X, S_WS, S_OUT = 4, 8, 12
sPtr = 16
sWave, sT, sT2, sH, sC, sTg, sCg, sPar, sP0, sM, sK, sBad = 22, 23, 24, 25, 26, 27, 28, 29, 30, 31, 32, 33
sMo, sMaskLo, sMaskHi, sSpin, sOdd, sOff = 34, 35, 36, 37, 38, 39
sEps, sLn2, sPair = 40, 42, 46
sC1, sC2, sC3 = 50, 51, 52
sStamp = 74

def emit_item(e, it):
    for x in it:
        if isinstance(x, tuple): e(x[0], tag=x[1])
        elif callable(x): x(e)
        else: e(x)

def merge(e, main, fill, first=0):
    n = max(len(main) - first, 1)
    done = 0
    for i, it in enumerate(main):
        if i >= first:
            want = ((i - first + 1) * len(fill) + n - 1) // n
            while done < min(want, len(fill)):
                emit_item(e, fill[done]); done += 1
        emit_item(e, it)
    while done < len(fill):
        emit_item(e, fill[done]); done += 1

def acc(sg, ct): return 20 * sg + 4 * ct
vA, vW, vLane = 80, 84, 89
vX = 92
vOutA, vOutS = 102, 103
vRW, vRR = 104, 107
vFlBp, vPoll = 108, 109
vT = 110
def buf(it, f): return 36 * (it % 3) + 4 * f

def loads(it):
    L = []
    if it < NH:
        if it > 0:
            L.append([f's_add_u32 s{sM}, s{sM}, 1', f's_cmp_eq_u32 s{sM}, {NH}', f's_cselect_b32 s{sM}, 0, s{sM}'])
        L.append([f's_lshl_b32 s{sK}, s{sM}, 12', f's_cmp_eq_u32 s{sM}, s{sBad}', f's_cselect_b32 s{sK}, {OOB}, s{sK}'])
    else:
        if it > NH:
            L.append([f's_add_u32 s{sMo}, s{sMo}, 1', f's_cmp_eq_u32 s{sMo}, {NO}', f's_cselect_b32 s{sMo}, 0, s{sMo}'])
        L.append([f's_lshl_b32 s{sK}, s{sMo}, 12', f's_add_u32 s{sK}, s{sK}, {54*1024}'])
    fl = OPT['ofl'] if it >= NH else ''
    def ld(f):
        r = buf(it, f)
        v = vA + f if f < 4 else vW + f - 4
        return [(f'buffer_load_dwordx4 a[{r}:{r+3}], v{v}, s[{S_WS}:{S_WS+3}], s{sK} offen {fl if f < 4 else ""}', ('main', it))]
    for f in (0, 4, 1, 2, 3, 5, 6, 7, 8): L.append(ld(f))
    return L

def mfmas(it):
    out = []
    for j in range(5):
        for sg in range(4):
            c = '0' if it == 0 else f'v[{acc(sg,j)}:{acc(sg,j)+3}]'
            w, a = buf(it, 4 + j), buf(it, sg)
            out.append([f'v_mfma_f32_16x16x32_bf16 v[{acc(sg,j)}:{acc(sg,j)+3}], a[{w}:{w+3}], a[{a}:{a+3}], {c}'])
    return out

def poll(e, name, vaddr, vdst):
    e(f's_mov_b32 s{sSpin}, 0')
    e(f'''
    L_{name}:
    v_cmp_ne_u32 vcc, 0, v{vdst}
    s_cmp_eq_u32 vcc_lo, -1
    s_cbranch_scc1 L_{name}_ok
    s_add_u32 s{sSpin}, s{sSpin}, 1
    s_cmp_gt_u32 s{sSpin}, 200000
    s_cbranch_scc1 L_{name}_ok
    ''')
    e(f'buffer_load_dword v{vdst}, v{vaddr}, s[{S_WS}:{S_WS+3}], 0 offen sc1')
    e.raw('  s_waitcnt vmcnt(0)')
    e(f's_branch L_{name}')
    e.vm.pop()
    e.label(f'L_{name}_ok')

def gemm(e, name, st):
    e(f'''
    v_lshlrev_b32 v{vT}, 4, v{vLane}
    s_lshl_b32 s{sT2}, s{sWave}, 10
    v_add_u32 v{vT}, s{sT2}, v{vT}
    ''')
    for sg in range(4):
        e(f'''
        s_add_u32 s{sT}, s{sWave}, {sg}
        s_and_b32 s{sT}, s{sT}, 3
        s_lshl_b32 s{sT2}, s{sTg}, 2
        s_add_u32 s{sT}, s{sT}, s{sT2}
        s_mul_i32 s{sT}, s{sT}, {ACT_TILE}
        ''')
        if ACT_OFF: e(f's_add_u32 s{sT}, s{sT}, {ACT_OFF}')
        e(f'v_add_u32 v{vA+sg}, s{sT}, v{vT}')
    e(f'''
    s_mul_i32 s{sT2}, s{sCg}, 5
    s_add_u32 s{sT}, s{sT2}, s{sOdd}
    s_mul_i32 s{sT}, s{sT}, {ACT_TILE}
    s_add_u32 s{sT}, s{sT}, {WCAT_OFF}
    v_add_u32 v{vW}, s{sT}, v{vT}
    v_add_u32 v{vW+1}, {ACT_TILE}, v{vW}
    v_add_u32 v{vW+2}, {2*ACT_TILE}, v{vW}
    v_add_u32 v{vW+3}, {3*ACT_TILE}, v{vW}
    s_cmp_eq_u32 s{sOdd}, 1
    s_cselect_b32 s{sT}, 0, 4
    s_add_u32 s{sT}, s{sT}, s{sT2}
    s_mul_i32 s{sT}, s{sT}, {ACT_TILE}
    s_add_u32 s{sT}, s{sT}, {WCAT_OFF}
    v_add_u32 v{vW+4}, s{sT}, v{vT}
    ''')
    rot = OPT['rot']
    if rot == 'none': e(f's_mov_b32 s{sM}, 0\ns_mov_b32 s{sMo}, 0')
    else:
        a, b = {'full': (2, None), 'small': (0, 1)}.get(rot, rot if isinstance(rot, tuple) else (0, 0))
        e(f's_and_b32 s{sT}, s{sH}, 3')
        if b is None:
            e(f's_mul_i32 s{sM}, s{sT}, 3\ns_lshr_b32 s{sT2}, s{sT}, 1\ns_add_u32 s{sM}, s{sM}, s{sT2}')
        else: e(f's_mul_i32 s{sM}, s{sT}, {b}')
        e(f'''
        s_lshr_b32 s{sT2}, s{sH}, 2
        s_add_u32 s{sMo}, s{sT2}, s{sT}
        s_mul_i32 s{sT2}, s{sT2}, {a}
        s_add_u32 s{sM}, s{sM}, s{sT2}
        ''')
        for _ in range(3):
            e(f's_cmp_ge_u32 s{sM}, {NH}\ns_cselect_b32 s{sT}, {NH}, 0\ns_sub_u32 s{sM}, s{sM}, s{sT}')
        e(f's_cmp_ge_u32 s{sMo}, {NO}\ns_cselect_b32 s{sT}, {NO}, 0\ns_sub_u32 s{sMo}, s{sMo}, s{sT}')
    e(f'''
    s_cmp_ge_u32 s{sWave}, 2
    s_cselect_b32 s{sBad}, {NH-1}, 99
    ''')
    D = OPT['dist']
    for it in range(D):
        for x in loads(it): emit_item(e, x)
    st(e, 'issued')
    e(f'''
    s_mov_b32 s{S_X}, s{sPtr}
    s_mov_b32 s{S_X+1}, s{sPtr+1}
    s_mov_b32 s{S_X+2}, {2048*1280}
    s_mov_b32 s{S_X+3}, 0x20000
    s_mov_b32 s{S_OUT}, s{sPtr+2}
    s_mov_b32 s{S_OUT+1}, s{sPtr+3}
    s_mov_b32 s{S_OUT+2}, {2048*1280}
    s_mov_b32 s{S_OUT+3}, 0x20000
    ''')
    n, g = vT + 2, vT + 3
    e(f'''
    v_and_b32 v{n}, 15, v{vLane}
    v_lshrrev_b32 v{g}, 4, v{vLane}
    s_lshl_b32 s{sT}, s{sTg}, 7
    s_add_u32 s{sT}, s{sT}, {FLAG_OFF}
    v_lshlrev_b32 v{vT}, 2, v{vLane}
    v_add_u32 v{vT}, s{sT}, v{vT}
    v_mov_b32 v{vT+1}, {OOB}
    v_cmp_gt_u32 vcc, 32, v{vLane}
    v_cndmask_b32 v{vFlBp}, v{vT+1}, v{vT}, vcc
    s_lshl_b32 s{sT}, s{sTg}, 6
    s_lshl_b32 s{sT2}, s{sWave}, 4
    s_add_u32 s{sT}, s{sT}, s{sT2}
    v_add_u32 v{vT}, s{sT}, v{n}
    v_mul_u32_u24 v{vT}, 1280, v{vT}
    s_mul_i32 s{sT}, s{sCg}, 160
    v_add_u32 v{vT}, s{sT}, v{vT}
    s_lshl_b32 s{sT2}, s{sOdd}, 5
    v_lshl_add_u32 v{vOutA}, v{g}, 4, v{vT}
    v_add_u32 v{vOutA}, s{sT2}, v{vOutA}
    s_cmp_eq_u32 s{sOdd}, 1
    s_cselect_b32 s{sT2}, 0, 128
    v_lshl_add_u32 v{vOutS}, v{g}, 3, v{vT}
    v_add_u32 v{vOutS}, s{sT2}, v{vOutS}
    v_lshlrev_b32 v{vT}, 4, v{vLane}
    s_mul_i32 s{sT}, s{sWave}, {3*5120}
    s_add_u32 s{sT}, s{sT}, {RED}
    v_add_u32 v{vRR}, s{sT}, v{vT}
    ''')
    for sg in range(1, 4):
        e(f'''
        s_add_u32 s{sT}, s{sWave}, {sg}
        s_and_b32 s{sT}, s{sT}, 3
        s_mul_i32 s{sT}, s{sT}, {3*5120}
        s_add_u32 s{sT}, s{sT}, {RED + (sg-1)*5120}
        v_add_u32 v{vRW+sg-1}, s{sT}, v{vT}
        ''')
    st(e, 'setup')
    xl = [[(f'buffer_load_dwordx4 v[{vX}:{vX+3}], v{vOutA}, s[{S_X}:{S_X+3}], 0 offen', ('x', 0))],
          [(f'buffer_load_dwordx4 v[{vX+4}:{vX+7}], v{vOutA}, s[{S_X}:{S_X+3}], 0 offen offset:64', ('x', 1))],
          [(f'buffer_load_dwordx2 v[{vX+8}:{vX+9}], v{vOutS}, s[{S_X}:{S_X+3}], 0 offen', ('x', 2))]]
    pl = [(f'buffer_load_dword v{vPoll}, v{vFlBp}, s[{S_WS}:{S_WS+3}], 0 offen sc1', ('poll', 0))]
    for it in range(NIT):
        fill = list(loads(it + D)) if it + D < NIT else []
        if it == OPT['xat']: fill = fill + xl
        if it == NH - D - 1: fill = [pl] + fill
        if it == NH - D:
            poll(e, f'{name}_pb', vFlBp, vPoll)
            st(e, 'pollb')
        merge(e, mfmas(it), fill, first=OPT['first'])
        st(e, f'i{it}')
    for sg in range(1, 4):
        for ct in range(5):
            e(f'ds_write_b128 v{vRW+sg-1}, v[{acc(sg,ct)}:{acc(sg,ct)+3}] offset:{ct*1024}')
    xmap = {0: vX, 1: vX + 2, 2: vX + 4, 3: vX + 6, 4: vX + 8}
    for ct in range(5):
        for h in range(2):
            e(f'v_lshlrev_b32 v{vT}, 16, v{xmap[ct]+h}')
            e(f'v_and_b32 v{vT+1}, 0xffff0000, v{xmap[ct]+h}')
            e(f'v_pk_add_f32 v[{acc(0,ct)+2*h}:{acc(0,ct)+2*h+1}], v[{acc(0,ct)+2*h}:{acc(0,ct)+2*h+1}], v[{vT}:{vT+1}]')
    e.waitcnt(lg=0)
    e.barrier()
    st(e, 'red')
    R = lambda ct, sg: vT + 2 + 12 * (ct % 3) + 4 * sg
    def rd(ct):
        for sg in range(3):
            e(f'ds_read_b128 v[{R(ct,sg)}:{R(ct,sg)+3}], v{vRR} offset:{sg*5120 + ct*1024}')
    for ct in range(3): rd(ct)
    ob = 80
    fl = OPT['outfl']
    for ct in range(5):
        for sg in range(3):
            for h in (0, 2):
                e(f'v_pk_add_f32 v[{acc(0,ct)+h}:{acc(0,ct)+h+1}], v[{acc(0,ct)+h}:{acc(0,ct)+h+1}], v[{R(ct,sg)+h}:{R(ct,sg)+h+1}]')
        if ct + 3 < 5: rd(ct + 3)
        e(f'v_cvt_pk_bf16_f32 v{ob+2*ct}, v{acc(0,ct)}, v{acc(0,ct)+1}')
        e(f'v_cvt_pk_bf16_f32 v{ob+2*ct+1}, v{acc(0,ct)+2}, v{acc(0,ct)+3}')
        if ct == 1: e(f'buffer_store_dwordx4 v[{ob}:{ob+3}], v{vOutA}, s[{S_OUT}:{S_OUT+3}], 0 offen {fl}')
        if ct == 3: e(f'buffer_store_dwordx4 v[{ob+4}:{ob+7}], v{vOutA}, s[{S_OUT}:{S_OUT+3}], 0 offen offset:64 {fl}')
        if ct == 4: e(f'buffer_store_dwordx2 v[{ob+8}:{ob+9}], v{vOutS}, s[{S_OUT}:{S_OUT+3}], 0 offen {fl}')
    st(e, 'end')

aLane, aN, aG = 15, 16, 17
aK, aQa, aP, aPL, aF, aFz, aO, aFl, aTrA, aTrB, aLw, aKw, aSy, aOne = 1, 2, 3, 4, 5, 6, 7, 8, 9, 10, 11, 12, 13, 14
aQ, aKr, aKp, aT = 20, 36, 48, 60
aFa, aFb = 84, 116

def phi(src, dst, tmp):
    it = []
    for g0 in range(0, len(src), 4):
        grp = list(range(g0, min(g0 + 4, len(src))))
        Y = lambda i: tmp + 6 * (i - g0)
        for i in grp:
            it.append([f'v_lshlrev_b32 v{Y(i)}, 16, v{src[i]}'])
            it.append([f'v_and_b32 v{Y(i)+1}, 0xffff0000, v{src[i]}'])
        for i in grp:
            it.append([f'v_exp_f32_e64 v{Y(i)+2}, v{Y(i)} clamp'])
            it.append([f'v_exp_f32_e64 v{Y(i)+3}, v{Y(i)+1} clamp'])
        for i in grp: it.append([f'v_pk_add_f32 v[{Y(i)+2}:{Y(i)+3}], v[{Y(i)+2}:{Y(i)+3}], s[{sEps}:{sEps+1}]'])
        for i in grp: it.append([f'v_pk_fma_f32 v[{Y(i)+4}:{Y(i)+5}], v[{Y(i)}:{Y(i)+1}], s[{sLn2}:{sLn2+1}], v[{Y(i)+2}:{Y(i)+3}]'])
        for i in grp:
            it.append([f'v_max_f32 v{Y(i)+4}, v{Y(i)+4}, v{Y(i)+2}'])
            it.append([f'v_max_f32 v{Y(i)+5}, v{Y(i)+5}, v{Y(i)+3}'])
        for i in grp: it.append([f'v_cvt_pk_bf16_f32 v{dst[i]}, v{Y(i)+4}, v{Y(i)+5}'])
    return it

def lds_sync(e, name, k):
    e.waitcnt(lg=0)
    e(f'ds_add_u32 v{aSy}, v{aOne} offset:{4*k}')
    e(f's_mov_b32 s{sSpin}, 0')
    e.label(f'L_{name}')
    e(f'ds_read_b32 v{aT}, v{aSy} offset:{4*k}')
    e.raw('  s_waitcnt lgkmcnt(0)')
    e.lg = []
    e(f'''
    v_readfirstlane_b32 s{sT}, v{aT}
    s_add_u32 s{sSpin}, s{sSpin}, 1
    s_cmp_ge_u32 s{sT}, 256
    s_cbranch_scc1 L_{name}_ok
    s_cmp_lt_u32 s{sSpin}, 1000000
    s_cbranch_scc1 L_{name}
    L_{name}_ok:
    ''')

def attention(e, name, st):
    T = aT
    if OPT['prio'] is not None: e(f's_setprio {OPT["prio"]}')
    e(f'''
    s_lshl_b32 s{sT}, s{sC}, 8
    s_lshl_b32 s{sT2}, s{sWave}, 6
    s_add_u32 s{sT}, s{sT}, s{sT2}
    s_lshl_b32 s{sT}, s{sT}, 4
    s_lshl_b32 s{sT2}, s{sP0}, 15
    s_add_u32 s{sOff}, s{sT}, s{sT2}
    s_add_u32 s{sOff}, s{sOff}, {QKV_OFF}
    v_lshlrev_b32 v{aLw}, 4, v{aLane}
    s_add_u32 s{sT}, s{sOff}, {80*PIECE}
    v_add_u32 v{aK}, s{sT}, v{aLw}
    s_lshl_b32 s{sT}, s{sWave}, 10
    s_add_u32 s{sC3}, s{sT}, {VBUF}
    v_add_u32 v{aLw}, s{sT}, v{aLw}
    s_mov_b32 s{sC1}, {PIECE}
    s_mov_b32 s{sC2}, {2*PIECE}
    ''')
    kr, kp = aKr, aKp
    e(f'buffer_load_dwordx4 v[{kr}:{kr+3}], v{aK}, s[{S_WS}:{S_WS+3}], 0 offen', tag=('k', 0))
    e(f'buffer_load_dwordx4 v[{kr+4}:{kr+7}], v{aK}, s[{S_WS}:{S_WS+3}], s{sC1} offen', tag=('k', 1))
    e(f'buffer_load_dwordx4 v[{kr+8}:{kr+11}], v{aK}, s[{S_WS}:{S_WS+3}], s{sC2} offen', tag=('k', 2))
    for j in range(3):
        e(f's_add_u32 m0, s{sC3}, {j*PSTR}')
        e(f's_mov_b32 s{sT}, {(80+j)*PIECE}')
        e(f'buffer_load_dwordx4 v{aK}, s[{S_WS}:{S_WS+3}], s{sT} offen lds', tag=('v', j))
    OO = T + 20
    e(f'''
    v_and_b32 v{aN}, 15, v{aLane}
    v_lshrrev_b32 v{aG}, 4, v{aLane}
    v_mov_b32 v{OO}, {OOB}
    v_lshlrev_b32 v{T}, 15, v{aG}
    v_lshl_add_u32 v{T}, v{aN}, 4, v{T}
    v_add_u32 v{T}, s{sOff}, v{T}
    v_cmp_gt_u32 vcc, 3, v{aG}
    v_cndmask_b32 v{aQa}, v{OO}, v{T}, vcc
    ''')
    for t in range(4):
        e(f'buffer_load_dwordx4 v[{aQ+4*t}:{aQ+4*t+3}], v{aQa}, s[{S_WS}:{S_WS+3}], 0 offen offset:{256*t}', tag=('q', t))
    st(e, 'aissued')
    e(f'''
    s_mov_b32 s{sEps}, 0x358637bd
    s_mov_b32 s{sEps+1}, 0x358637bd
    s_mov_b32 s{sLn2}, 0x3f317218
    s_mov_b32 s{sLn2+1}, 0x3f317218
    s_cmp_eq_u32 s{sPar}, 1
    s_cselect_b32 s{sMaskLo}, 0, -1
    s_cselect_b32 s{sMaskHi}, -1, 0
    v_mov_b32 v{aOne}, 1
    v_mov_b32 v{aSy}, {SYNC}
    ''')
    e(f'''
    s_and_b32 s{sT}, s{sWave}, 1
    s_lshr_b32 s{sT2}, s{sWave}, 1
    s_cmp_eq_u32 s{sT}, 1
    s_cselect_b32 s{sK}, 9, 10
    s_lshl_b32 s{sK}, s{sT2}, s{sK}
    s_lshl_b32 s{sM}, s{sT}, 11
    s_add_u32 s{sK}, s{sK}, s{sM}
    s_cmp_eq_u32 s{sT}, 1
    s_cselect_b32 s{sM}, 32, 64
    s_mul_i32 s{sMo}, s{sH}, {8*PSZ}
    s_add_u32 s{sK}, s{sK}, s{sMo}
    s_add_u32 s{sK}, s{sK}, {KVP_OFF}
    v_lshlrev_b32 v{T}, 4, v{aLane}
    v_add_u32 v{T}, s{sK}, v{T}
    v_cmp_gt_u32 vcc, s{sM}, v{aLane}
    v_cndmask_b32 v{aPL}, v{OO}, v{T}, vcc
    s_mul_i32 s{sK}, s{sC}, {PSZ}
    v_add_u32 v{T}, s{sK}, v{T}
    v_cndmask_b32 v{aP}, v{OO}, v{T}, vcc
    ''')
    e(f'''
    s_lshl_b32 s{sK}, s{sT2}, 4
    v_add_u32 v{T}, s{sK}, v{aN}
    v_cmp_ge_u32 s[{sPair}:{sPair+1}], 24, v{T}
    v_mul_u32_u24 v{T}, 48, v{T}
    s_lshl_b32 s{sK}, s{sT}, 5
    v_lshl_add_u32 v{T}, v{aG}, 3, v{T}
    v_add_u32 v{T}, s{sK}, v{T}
    v_add_u32 v{T}, {KVA}, v{T}
    v_lshlrev_b32 v{T+1}, 3, v{aLane}
    v_add_u32 v{T+2}, {KVA + 1536}, v{T+1}
    v_cndmask_b32 v{T}, v{T+2}, v{T}, s[{sPair}:{sPair+1}]
    v_add_u32 v{T+1}, {KVA + 1216 - 256}, v{T+1}
    s_cmp_eq_u32 s{sWave}, 3
    s_cbranch_scc1 L_{name}_kw3
    v_mov_b32 v{T+1}, v{T+2}
    L_{name}_kw3:
    v_cndmask_b32 v{aKw}, v{T+1}, v{T}, vcc
    ''')
    e(f'''
    v_bfe_u32 v{T}, v{aLane}, 2, 2
    v_lshl_add_u32 v{T}, v{aG}, 3, v{T}
    v_lshlrev_b32 v{T}, 4, v{T}
    v_and_b32 v{T+1}, 1, v{aLane}
    v_lshl_add_u32 v{T}, v{T+1}, 3, v{T}
    v_bfe_u32 v{T+1}, v{aLane}, 1, 1
    s_lshl_b32 s{sT}, s{sT}, 1
    v_add_u32 v{T+2}, s{sT}, v{T+1}
    v_min_u32 v{T+2}, 2, v{T+2}
    v_mul_u32_u24 v{T+2}, {PSTR}, v{T+2}
    v_add_u32 v{aTrA}, v{T+2}, v{T}
    s_lshl_b32 s{sT2}, s{sT2}, 1
    v_add_u32 v{T+2}, s{sT2}, v{T+1}
    v_mul_u32_u24 v{T+2}, {PSTR}, v{T+2}
    v_add_u32 v{T+2}, {VBUF}, v{T+2}
    v_add_u32 v{aTrB}, v{T+2}, v{T}
    ''')
    e(f'''
    v_lshrrev_b32 v{T}, 2, v{aN}
    v_and_b32 v{T+1}, 3, v{aN}
    v_lshl_add_u32 v{T+1}, v{T}, 3, v{T+1}
    v_mul_u32_u24 v{T+1}, 48, v{T+1}
    v_lshl_add_u32 v{T+1}, v{aG}, 4, v{T+1}
    v_add_u32 v{T+1}, {KVA}, v{T+1}
    v_mov_b32 v{T+2}, {KVA+1216}
    v_cmp_gt_u32 vcc, 3, v{aG}
    v_cmp_gt_u32 s[{sPair}:{sPair+1}], 3, v{T}
    v_lshlrev_b32 v{T+3}, 4, v{aG}
    v_add_u32 v{T+3}, {KVA+1152}, v{T+3}
    v_cndmask_b32 v{aFz}, v{T+2}, v{T+3}, vcc
    s_and_b64 s[{sPair}:{sPair+1}], vcc, s[{sPair}:{sPair+1}]
    v_cndmask_b32 v{aF}, v{T+2}, v{T+1}, s[{sPair}:{sPair+1}]
    ''')
    e(f'''
    s_mul_i32 s{sT}, s{sH}, 3
    v_add_u32 v{T}, s{sT}, v{aG}
    v_lshrrev_b32 v{T+1}, 2, v{T}
    v_lshlrev_b32 v{T+1}, 10, v{T+1}
    v_and_b32 v{T}, 3, v{T}
    v_lshl_add_u32 v{T}, v{T}, 4, v{aN}
    v_lshl_add_u32 v{T}, v{T}, 4, v{T+1}
    s_lshl_b32 s{sT}, s{sC}, 2
    s_add_u32 s{sT}, s{sT}, s{sWave}
    s_mul_i32 s{sT2}, s{sT}, {4*ACT_TILE}
    s_add_u32 s{sT2}, s{sT2}, {ACT_OFF + 54*1024}
    v_add_u32 v{T}, s{sT2}, v{T}
    v_cndmask_b32 v{aO}, v{OO}, v{T}, vcc
    s_lshl_b32 s{sT}, s{sT}, 7
    s_lshl_b32 s{sT2}, s{sH}, 2
    s_add_u32 s{sT}, s{sT}, s{sT2}
    s_add_u32 s{sT}, s{sT}, {FLAG_OFF}
    v_mov_b32 v{T}, s{sT}
    v_cmp_eq_u32 vcc, 0, v{aLane}
    v_cndmask_b32 v{aFl}, v{OO}, v{T}, vcc
    ''')
    e(f'''
    v_mov_b32 v{T}, 0x3f80
    v_mov_b32 v{T+1}, 0
    v_mov_b32 v{T+2}, 0
    v_mov_b32 v{T+3}, 0
    ds_write_b128 v{aLw}, v[{T}:{T+3}] offset:{VBUF + 3*PSTR}
    ''')
    st(e, 'asetup')
    A1 = phi([kr + i for i in range(12)], [kp + i for i in range(12)], T)
    for i in (0, 1): A1.append([f'v_and_b32 v{kp+i}, s{sMaskLo}, v{kp+i}'])
    for i in (10, 11): A1.append([f'v_and_b32 v{kp+i}, s{sMaskHi}, v{kp+i}'])
    for j in range(3):
        A1.append([f'ds_write_b128 v{aLw}, v[{kp+4*j}:{kp+4*j+3}] offset:{KBUF + j*PSTR}'])
    for it in A1: emit_item(e, it)
    e.wait_vm_tag(lambda t: t[0] == 'v')
    lds_sync(e, f'{name}_s0', 0)
    st(e, 'a1')
    fa, fb = aFa, aFb
    rd = []
    for s in range(8):
        rd.append([[f'ds_read_b64_tr_b16 v[{fa+4*s+2*h}:{fa+4*s+2*h+1}], v{aTrA} offset:{s*512 + h*64}'] for h in range(2)] +
                  [[f'ds_read_b64_tr_b16 v[{fb+4*s+2*h}:{fb+4*s+2*h+1}], v{aTrB} offset:{s*512 + h*64}'] for h in range(2)])
    p0, p1 = T, T + 4
    for s in range(3):
        for it in rd[s]: emit_item(e, it)
    for s in range(8):
        if s + 3 < 8:
            for it in rd[s + 3]: emit_item(e, it)
        p = p0 if s % 2 == 0 else p1
        c = '0' if s < 2 else f'v[{p}:{p+3}]'
        e(f'v_mfma_f32_16x16x32_bf16 v[{p}:{p+3}], v[{fa+4*s}:{fa+4*s+3}], v[{fb+4*s}:{fb+4*s+3}], {c}')
    e(f'v_pk_add_f32 v[{p0}:{p0+1}], v[{p0}:{p0+1}], v[{p1}:{p1+1}]')
    e(f'v_pk_add_f32 v[{p0+2}:{p0+3}], v[{p0+2}:{p0+3}], v[{p1+2}:{p1+3}]')
    e(f'buffer_store_dwordx4 v[{p0}:{p0+3}], v{aP}, s[{S_WS}:{S_WS+3}], 0 offen sc1', tag=('pst', 0))
    st(e, 'a2')
    qs = [aQ + i for i in range(16)]
    for it in phi(qs, qs, T + 8): emit_item(e, it)
    st(e, 'q')
    pr = aFa
    e(f's_mov_b32 s{sSpin}, 0')
    e.label(f'L_{name}_pl')
    for c in range(8):
        e(f's_mov_b32 s{sT}, {c*PSZ}')
        e(f'buffer_load_dwordx4 v[{pr+4*c}:{pr+4*c+3}], v{aPL}, s[{S_WS}:{S_WS+3}], s{sT} offen sc1', tag=('pl', c))
    m = aFb
    for c in range(8):
        e(f'v_max3_u32 v{m+c}, v{pr+4*c}, v{pr+4*c+1}, v{pr+4*c+2}')
        e(f'v_max_u32 v{m+c}, v{m+c}, v{pr+4*c+3}')
    e(f'''
    v_max3_u32 v{m}, v{m}, v{m+1}, v{m+2}
    v_max3_u32 v{m+3}, v{m+3}, v{m+4}, v{m+5}
    v_max3_u32 v{m}, v{m}, v{m+6}, v{m+7}
    v_max_u32 v{m}, v{m}, v{m+3}
    v_cmp_eq_u32 vcc, -1, v{m}
    s_add_u32 s{sSpin}, s{sSpin}, 1
    s_cmp_eq_u64 vcc, 0
    s_cbranch_scc1 L_{name}_pl_ok
    s_cmp_lt_u32 s{sSpin}, 100000
    s_cbranch_scc1 L_{name}_pl
    L_{name}_pl_ok:
    ''')
    st(e, 'b0')
    for (a, b) in ((0, 1), (2, 3), (4, 5), (6, 7), (0, 2), (4, 6), (0, 4)):
        for h in (0, 2):
            e(f'v_pk_add_f32 v[{pr+4*a+h}:{pr+4*a+h+1}], v[{pr+4*a+h}:{pr+4*a+h+1}], v[{pr+4*b+h}:{pr+4*b+h+1}]')
    e(f'''
    v_cvt_pk_bf16_f32 v{pr+4}, v{pr}, v{pr+1}
    v_cvt_pk_bf16_f32 v{pr+5}, v{pr+2}, v{pr+3}
    ds_write_b64 v{aKw}, v[{pr+4}:{pr+5}]
    ''')
    lds_sync(e, f'{name}_s1', 1)
    st(e, 'b1')
    f0, f1, fz = aKr, aKr + 4, aKr + 8
    e(f'ds_read_b128 v[{f0}:{f0+3}], v{aF}')
    e(f'ds_read_b128 v[{f1}:{f1+3}], v{aF} offset:192')
    e(f'ds_read_b128 v[{fz}:{fz+3}], v{aFz}')
    e(f's_mov_b32 s{sC1}, {ACT_TILE}\ns_mov_b32 s{sC2}, {2*ACT_TILE}\ns_mov_b32 s{sC3}, {3*ACT_TILE}')
    D = lambda t, i: T + 12 * t + 4 * i
    for t in range(4):
        q = f'v[{aQ+4*t}:{aQ+4*t+3}]'
        e(f'v_mfma_f32_16x16x32_bf16 v[{D(t,2)}:{D(t,2)+3}], v[{fz}:{fz+3}], {q}, 0')
        e(f'v_mfma_f32_16x16x32_bf16 v[{D(t,0)}:{D(t,0)+3}], v[{f0}:{f0+3}], {q}, 0')
        e(f'v_mfma_f32_16x16x32_bf16 v[{D(t,1)}:{D(t,1)+3}], v[{f1}:{f1+3}], {q}, 0')
    for t in range(4):
        z = D(t, 2)
        e(f'v_add_f32 v{z}, 0x358637bd, v{z}')
        e(f'v_rcp_f32 v{z}, v{z}')
    for t in range(4):
        z = D(t, 2); o = aFb + 4 * t
        e(f'v_mov_b32 v{z+1}, v{z}')
        for i in range(2):
            for h in (0, 2):
                e(f'v_pk_mul_f32 v[{D(t,i)+h}:{D(t,i)+h+1}], v[{D(t,i)+h}:{D(t,i)+h+1}], v[{z}:{z+1}]')
        for i in range(2):
            for h in (0, 2):
                e(f'v_cvt_pk_bf16_f32 v{o+2*i+h//2}, v{D(t,i)+h}, v{D(t,i)+h+1}')
        so = '0' if t == 0 else f's{(sC1, sC2, sC3)[t-1]}'
        e(f'buffer_store_dwordx4 v[{o}:{o+3}], v{aO}, s[{S_WS}:{S_WS+3}], {so} offen sc1', tag=('ost', t))
    st(e, 'b2')
    e.wait_vm_tag(lambda t: t[0] == 'ost')
    e(f'buffer_store_dword v{aOne}, v{aFl}, s[{S_WS}:{S_WS+3}], 0 offen sc1')
    st(e, 'aend')

def k2(name, dbg=False):
    e = Emit()
    st = Stamps(OPT['stamps'] if dbg else ())
    sta = Stamps(OPT['astamps'] if dbg else ())
    e.raw(f'.globl {name}\n.p2align 8\n.type {name},@function\n{name}:')
    e(f'''
    s_cmp_ge_u32 s2, 256
    s_cbranch_scc1 L_{name}_end
    s_load_dwordx2 s[{sPtr}:{sPtr+1}], s[0:1], 0
    s_load_dwordx2 s[{sPtr+2}:{sPtr+3}], s[0:1], 56
    s_load_dwordx2 s[{sPtr+4}:{sPtr+5}], s[0:1], 72
    ''')
    if dbg:
        e('s_memrealtime s[70:71]')
        e(f's_memtime s[{sStamp}:{sStamp+1}]')
        st.names.append('start'); sta.names.append('start')
    e.smem_pending = set()
    e(f'''
    v_and_b32 v{aLane}, 63, v0
    v_lshrrev_b32 v1, 6, v0
    v_mov_b32 v2, {SYNC}
    v_readfirstlane_b32 s{sC3}, v1
    v_mov_b32 v4, 0
    v_mov_b32 v5, 0
    ds_write_b64 v2, v[4:5]
    s_and_b32 s{sC}, s2, 7
    s_lshr_b32 s{sH}, s2, 3
    s_lshr_b32 s{sT}, s{sC}, 1
    s_lshl_b32 s{sTg}, s{sT}, 3
    s_lshr_b32 s{sT}, s{sH}, 2
    s_add_u32 s{sTg}, s{sTg}, s{sT}
    s_and_b32 s{sT}, s{sC}, 1
    s_lshl_b32 s{sCg}, s{sT}, 2
    s_and_b32 s{sT}, s{sH}, 3
    s_add_u32 s{sCg}, s{sCg}, s{sT}
    s_and_b32 s{sPar}, s{sH}, 1
    s_mul_i32 s{sP0}, s{sH}, 5
    s_lshr_b32 s{sP0}, s{sP0}, 1
    s_and_b32 s{sOdd}, s{sCg}, 1
    s_and_b32 s{sWave}, s{sC3}, 3
    ''')
    e.raw('  s_waitcnt lgkmcnt(0)')
    e.lg = []
    e.barrier()
    e(f'''
    s_mov_b32 s{S_WS}, s{sPtr+4}
    s_mov_b32 s{S_WS+1}, s{sPtr+5}
    s_mov_b32 s{S_WS+2}, {WS_SIZE}
    s_mov_b32 s{S_WS+3}, 0x20000
    s_cmp_ge_u32 s{sC3}, 4
    s_cbranch_scc{0 if OPT['swap'] else 1} L_{name}_att
    v_mov_b32 v{vLane}, v{aLane}
    ''')
    eA = e.clone()
    st(e, 'karg')
    gemm(e, name, st)
    if st.on: dump(e, st, 0, vLane)
    e('s_endpgm')
    eA.label(f'L_{name}_att')
    sta(eA, 'karg')
    attention(eA, name, sta)
    if sta.on: dump(eA, sta, 4, aLane)
    eA.label(f'L_{name}_end')
    eA('s_endpgm')
    e.lines += eA.lines
    e.stamp_names = st.names; e.astamp_names = sta.names
    e.count2 = eA.count
    return e

def dump(e, st, w0, lane):
    e.waitcnt(lg=0)
    e(f's_memrealtime s[{sPair}:{sPair+1}]')
    e(f's_lshl_b32 s{sT}, s2, 3')
    e(f's_add_u32 s{sT}, s{sT}, s{sWave}')
    e(f's_add_u32 s{sT}, s{sT}, {w0}')
    e(f's_lshl_b32 s{sT}, s{sT}, 7')
    e(f's_add_u32 s{sT}, s{sT}, {DBG_OFF + 0x40000}')
    e('v_mbcnt_lo_u32_b32 v140, -1, 0')
    e('v_mbcnt_hi_u32_b32 v140, -1, v140')
    e('v_lshlrev_b32 v140, 2, v140')
    e(f'v_mov_b32 v141, 0')
    e.waitcnt(lg=0)
    for i in range(len(st.names)):
        e(f'v_writelane_b32 v141, s{sStamp+2*i}, {i}')
    e(f'v_writelane_b32 v141, s{sPair}, 14')
    e(f'v_writelane_b32 v141, s70, 15')
    e(f'v_mov_b32 v143, {OOB}')
    e(f'v_cmp_gt_u32 vcc, 128, v140')
    e(f'v_cndmask_b32 v140, v143, v140, vcc')
    e(f'buffer_store_dword v141, v140, s[{S_WS}:{S_WS+3}], s{sT} offen')

if __name__ == '__main__':
    import sys
    e = k2('k2_kernel', dbg=False)
    print(e.text())
    print(e.count, e.count2, e.nops, e.waits, file=sys.stderr)
```

```python
import sys
sys.path.insert(0, "work")
import gen_k1 as G1, gen_k2 as G2
NAME = "parallel_sum__linear_attn_block__glu_gated_bilinear__prompt"
def kd(name, acc, total):
    return f""".section .rodata,"a"
.p2align 6
.amdhsa_kernel {name}
  .amdhsa_next_free_vgpr {total}
  .amdhsa_next_free_sgpr 102
  .amdhsa_accum_offset {acc}
  .amdhsa_group_segment_fixed_size 0
  .amdhsa_kernarg_size 80
  .amdhsa_user_sgpr_count 2
  .amdhsa_user_sgpr_kernarg_segment_ptr 1
  .amdhsa_system_sgpr_workgroup_id_x 1
.end_amdhsa_kernel
"""
def build(label):
    o1, o2 = (label.split('|') + [''])[:2]
    G1.OPT.update(eval("dict(" + o1 + ")")); G2.OPT.update(eval("dict(" + o2 + ")"))
    G1.OPT['stamps'] = (); G2.OPT['stamps'] = (); G2.OPT['astamps'] = ()
    e1 = G1.k1("k1_kernel", dbg=False); e2 = G2.k2("k2_kernel", dbg=False)
    ref = open(f"cdna_kernels/{NAME}.s.ref").read().split('\n')
    head = [l for l in ref if l.startswith(';   offset') or l.startswith('; Kernarg')]
    txt = '\n'.join(head) + '\n'
    txt += "; k1: layernorm folded into the qkv / gate / up projections, h = gate * up, repack of [w_down ; wo]\n"
    txt += "; k2: linear attention and out = x + [h | o] @ [w_down ; wo]\n"
    txt += f"; @launch kernel=k1_kernel grid=(256,1,1) block=(256,1,1) lds={G1.K1_LDS}\n"
    txt += f"; @launch kernel=k2_kernel grid=(256,1,1) block=(512,1,1) lds={G2.K2_LDS}\n"
    txt += '.amdgcn_target "amdgcn-amd-amdhsa--gfx950"\n.text\n' + e1.text() + e2.text()
    txt += kd("k1_kernel", 256, 512) + kd("k2_kernel", G2.ACC_OFF, 256)
    return txt
if __name__ == '__main__':
    out = sys.argv[2] if len(sys.argv) > 2 else f"cdna_kernels/{NAME}.s"
    t = build(sys.argv[1]); open(out, 'w').write(t); print(out, len(t), 'bytes')
```

```python
import sys
sys.path.insert(0, "work")
import gen_k1 as G1, gen_k2 as G2
from build import kd, NAME
STD1 = ('start', 'karg', 'data0', 's0', 's4', 's14', 's19', 'end')
STD2 = ('karg', 'issued', 'i0', 'i1', 'i3', 'i6', 'i9', 'i11', 'pollb', 'i13', 'i19', 'red', 'end')
STDA = ('karg', 'aissued', 'asetup', 'a1', 'a2', 'q', 'b0', 'b1', 'b2', 'aend')
def k3(offa, offb, shift):
    t = f"""
.globl k3_kernel
.p2align 8
.type k3_kernel,@function
k3_kernel:
  s_cmp_ge_u32 s2, 1
  s_cbranch_scc1 L_k3_end
  s_load_dwordx2 s[4:5], s[0:1], 72
  s_waitcnt lgkmcnt(0)
  s_mov_b32 s6, 0x10000000
  s_mov_b32 s7, 0x20000
  v_mov_b32 v1, {offa if offa is not None else 0}
  v_mov_b32 v2, {offb}
  buffer_load_dword v3, v1, s[4:7], 0 offen sc1
  buffer_load_dword v4, v2, s[4:7], 0 offen sc1
  s_memrealtime s[10:11]
  s_waitcnt vmcnt(0) lgkmcnt(0)
  v_readfirstlane_b32 s12, v3
  v_readfirstlane_b32 s13, v4
"""
    if offa is None: t += "  s_mov_b32 s12, s10\n"
    t += "  s_sub_u32 s12, s12, s13\n"
    if shift > 0: t += f"  s_lshl_b32 s12, s12, {shift}\n"
    if shift < 0: t += f"  s_lshr_b32 s12, s12, {-shift}\n"
    if shift == 99: t += "  s_mov_b32 s12, 0\n"
    t += """  s_min_u32 s12, s12, 40000
  s_mov_b32 s14, 0
L_k3_spin:
  s_memrealtime s[16:17]
  s_waitcnt lgkmcnt(0)
  s_sub_u32 s15, s16, s10
  s_add_u32 s14, s14, 1
  s_cmp_ge_u32 s15, s12
  s_cbranch_scc1 L_k3_end
  s_cmp_lt_u32 s14, 1000000
  s_cbranch_scc1 L_k3_spin
L_k3_end:
  s_endpgm
"""
    return t
def build(label, offa, offb, shift):
    o1, o2 = (label.split('|') + [''])[:2]
    G1.OPT.update(eval("dict(" + o1 + ")")); G2.OPT.update(eval("dict(" + o2 + ")"))
    G1.OPT['stamps'] = STD1; G2.OPT['stamps'] = STD2; G2.OPT['astamps'] = STDA
    e1 = G1.k1("k1_kernel", dbg=True); e2 = G2.k2("k2_kernel", dbg=True)
    txt = f"; @launch kernel=k1_kernel grid=(256,1,1) block=(256,1,1) lds={G1.K1_LDS}\n"
    txt += f"; @launch kernel=k2_kernel grid=(256,1,1) block=(512,1,1) lds={G2.K2_LDS}\n"
    txt += f"; @launch kernel=k3_kernel grid=(1,1,1) block=(64,1,1) lds=0\n"
    txt += '.amdgcn_target "amdgcn-amd-amdhsa--gfx950"\n.text\n' + e1.text() + e2.text() + k3(offa, offb, shift)
    txt += kd("k1_kernel", 256, 512) + kd("k2_kernel", G2.ACC_OFF, 256) + kd("k3_kernel", 16, 16)
    return txt, e1, e2
def row1(wg, wave=0): return G1.DBG_OFF + (wg * 4 + wave) * 128
def row2(wg, wave=0): return G1.DBG_OFF + 0x40000 + (wg * 8 + wave) * 128
if __name__ == '__main__':
    label = sys.argv[1]; wg = int(sys.argv[2]) if len(sys.argv) > 2 else 100
    r1, r2 = row1(wg), row2(wg)
    V = dict(zero=(r1, r1, 99), k1dur=(r1 + 56, r1 + 60, 2), k2start=(r2 + 60, r1 + 60, 2), now=(None, r1 + 60, 2),
             data0=(r1 + 8, r1, -2), k1end=(r1 + 28, r1, -2), s0=(r1 + 12, r1, -2), s4=(r1 + 16, r1, -2), karg=(r1 + 4, r1, -1),
             k2dur=(r2 + 56, r2 + 60, 2))
    for n in sys.argv[3:]:
        t, e1, e2 = build(label, *V[n]); open(f"diag_{n}.s", 'w').write(t)
    print(e1.stamp_names, e2.stamp_names)
```
